```python
import torch

def _softmax(x, axis=-1):
    return torch.softmax(x, dim=axis)

def _gelu(x):
    return torch.nn.functional.gelu(x, approximate='tanh')

def _silu(x):
    return torch.nn.functional.silu(x)

def _sigmoid(x):
    return torch.sigmoid(x)

def _layernorm(x, axis=-1, eps=1e-05):
    m = x.mean(dim=axis, keepdim=True)
    v = x.var(dim=axis, keepdim=True, unbiased=False)
    return (x - m) / torch.sqrt(v + eps)

def _scatter_add(tgt, idx, src, axis=0):
    return tgt.clone().index_add_(axis, idx, src)

def _segment_sum(src, seg, n):
    out = torch.zeros((n,) + src.shape[1:], dtype=src.dtype)
    return out.index_add_(0, seg, src)

def _pad(x, pw):
    flat = tuple((v for pair in reversed(pw) for v in pair))
    return torch.nn.functional.pad(x, flat)
kernel_name = 'parallel_sum__grouped_kv_mqa__mixer_gmlp__prompt'

def setup_inputs():

    _w = lambda a: (lambda t: t.to(torch.bfloat16) if t.is_floating_point() else t)(torch.as_tensor(a))

    def _A_setup():
        B, S, D, H = (1, 2048, 512, 32)
        Dh = D // H
        return {'x': _w((lambda *s: torch.randn(*s, dtype=torch.bfloat16) * 0.05)(B, S, D)), 'wq': _w((lambda *s: torch.randn(*s, dtype=torch.bfloat16) * 0.1)(D, H * Dh)), 'wk': _w((lambda *s: torch.randn(*s, dtype=torch.bfloat16) * 0.1)(D, Dh)), 'wv': _w((lambda *s: torch.randn(*s, dtype=torch.bfloat16) * 0.05)(D, Dh)), 'wo': _w((lambda *s: torch.randn(*s, dtype=torch.bfloat16) * 0.05)(H * Dh, D))}
    _A_in = _A_setup()

    def _B_setup():
        B, S, D, F = (1, 2048, 512, 1792)
        Fh = F // 2
        return {'x': _w((lambda *s: torch.randn(*s, dtype=torch.bfloat16) * 0.05)(B, S, D)), 'w_in': _w((lambda *s: torch.randn(*s, dtype=torch.bfloat16) * 0.2)(D, 2 * Fh)), 'w_sp': _w(0.01 * (lambda *s: torch.randn(*s, dtype=torch.bfloat16) * 0.2)(S, S)), 'b_sp': _w(1.0 + 0.01 * (lambda *s: torch.randn(*s, dtype=torch.bfloat16) * 0.05)(S)), 'w_out': _w((lambda *s: torch.randn(*s, dtype=torch.bfloat16) * 0.05)(Fh, D))}
    _B_in = _B_setup()
    return {'A_x': _A_in['x'], 'A_wq': _A_in['wq'], 'A_wk': _A_in['wk'], 'A_wv': _A_in['wv'], 'A_wo': _A_in['wo'], 'B_x': _B_in['x'], 'B_w_in': _B_in['w_in'], 'B_w_sp': _B_in['w_sp'], 'B_b_sp': _B_in['b_sp'], 'B_w_out': _B_in['w_out']}

def reference(A_x, A_wq, A_wk, A_wv, A_wo, B_x, B_w_in, B_w_sp, B_b_sp, B_w_out):

    def _A_ref(x, wq, wk, wv, wo):
        B, S, D = x.shape
        H = 32
        Dh = D // H
        q = (lambda x, *d: x.permute(*d))((x @ wq).reshape(B, S, H, Dh), 0, 2, 1, 3)
        k = x @ wk
        v = x @ wv
        scores = torch.einsum('bhqd,bkd->bhqk', q, k) * Dh ** (-0.5)
        p = _softmax(scores, axis=-1)
        o = torch.einsum('bhqk,bkd->bhqd', p, v)
        return (lambda x, *d: x.permute(*d))(o, 0, 2, 1, 3).reshape(B, S, H * Dh) @ wo

    def _B_ref(x, w_in, w_sp, b_sp, w_out):
        B, S, D = x.shape
        F = w_in.shape[-1]
        Fh = F // 2
        z = _gelu(torch.einsum('bsd,df->bsf', x, w_in))
        z1 = z[..., :Fh].clone()
        z2 = _layernorm(z[..., Fh:], axis=-1)
        g = torch.einsum('ts,bsf->btf', w_sp, z2) + b_sp[None, :, None]
        return torch.einsum('bsf,fd->bsd', z1 * g, w_out)
    x = A_x
    xn = _layernorm(x, axis=-1)
    return x + _A_ref(xn, A_wq, A_wk, A_wv, A_wo) + _B_ref(xn, B_w_in, B_w_sp, B_b_sp, B_w_out)
```

```python
class Q:
    def __init__(self, name, maxv):
        self.name, self.maxv = name, maxv
        self.items = []
    def issue(self, tag):
        self.items.append(tag)
    def need(self, tag):
        idx = [i for i, t in enumerate(self.items) if t == tag]
        if not idx: return None
        n = len(self.items) - 1 - idx[-1]
        return n
    def waited(self, n):
        if n < len(self.items):
            self.items = self.items[len(self.items) - n:] if n > 0 else []
    def copy(self):
        q = Q(self.name, self.maxv); q.items = list(self.items); return q

class Asm:
    def __init__(self):
        self.lines = []
        self.vm = Q('vmcnt', 63)
        self.lg = Q('lgkmcnt', 15)
        self.mute = False
    def __call__(self, s=""):
        if not self.mute:
            for l in s.split("\n"):
                self.lines.append(l if (l.endswith(":") or l.startswith(".")) else "    " + l.strip())
    def label(self, s):
        if not self.mute: self.lines.append(s + ":")
    def c(self, s):
        if not self.mute: self.lines.append("    ; " + s)
    def vmem(self, s, tag):
        self(s); self.vm.issue(tag)
    def ds(self, s, tag):
        self(s); self.lg.issue(tag)
    def wait(self, vm=None, lg=None):
        parts = []
        def res(q, tags):
            if tags is None: return None
            if not isinstance(tags, list): tags = [tags]
            ns = [q.need(t) for t in tags]
            ns = [n for n in ns if n is not None]
            if not ns: return None
            n = min(ns)
            n = min(n, q.maxv)
            q.waited(n)
            return n
        a = res(self.vm, vm); b = res(self.lg, lg)
        if a is not None: parts.append("vmcnt(%d)" % a)
        if b is not None: parts.append("lgkmcnt(%d)" % b)
        if parts: self("s_waitcnt " + " ".join(parts))
    def wait_all(self, vm=True, lg=True):
        parts = []
        if vm: parts.append("vmcnt(0)"); self.vm.waited(0)
        if lg: parts.append("lgkmcnt(0)"); self.lg.waited(0)
        self("s_waitcnt " + " ".join(parts))
    def text(self):
        return "\n".join(self.lines) + "\n"

def vr(base, n=1):
    return "v%d" % base if n == 1 else "v[%d:%d]" % (base, base + n - 1)
def sr(base, n=1):
    return "s%d" % base if n == 1 else "s[%d:%d]" % (base, base + n - 1)
```

```python
from asm import *
from layout import *
import math

vL, vH, vN = 1, 2, 3
vZsrc, vQsrc = 4, 5
vAz, vAz2, vAq, vAq2 = 6, 7, 8, 9
vX0 = 10
vT = 14
BUF0, BUF1 = 32, 48
ZV, A1, AQ = 64, 80, 96
XS = 64
vC0 = 112
XN = 128
sX, sWIN, sWQ, sWS = 4, 8, 12, 16
sWK, sWV, sDBG = 20, 22, 24
sI, sJ, sW, sNB, sCG = 26, 27, 28, 29, 30
sT = 32
sC1 = 48
sQW = 49
sSoff = 50
LDS_RING = 0
LDS_XN = 65536
LDS_S4 = 131072
LDS_MISC = 147456
LDS_STAT = LDS_MISC
LDS_MR = LDS_MISC + 2048
LDS_TR = LDS_XN
GELU_C0 = -2.0 * math.sqrt(2.0 / math.pi) * math.log2(math.e)
GELU_C1 = GELU_C0 * 0.044715
QSCALE = 0.25 * math.log2(math.e)
import struct
def f2u(x): return struct.unpack('<I', struct.pack('<f', x))[0]

def mfma(a, D, A, B, C):
    c = "0" if C is None else vr(C, 16)
    a(f"v_mfma_f32_32x32x16_bf16 {vr(D,16)}, {vr(A,4)}, {vr(B,4)}, {c}")

def slot_addr(slot):
    return LDS_S4 if slot == 4 else slot * 16384

def gelu(a, base, n, t):
    for g in range(0, n, 4):
        R = [base + g + k for k in range(4)]
        T = [t + k for k in range(4)]
        for r, x in zip(R, T): a(f"v_mul_f32 v{x}, v{r}, v{r}")
        for r, x in zip(R, T): a(f"v_fma_f32 v{x}, v{x}, s{sC1}, v{vC0}")
        for r, x in zip(R, T): a(f"v_mul_f32 v{x}, v{x}, v{r}")
        for r, x in zip(R, T): a(f"v_exp_f32 v{x}, v{x}")
        for r, x in zip(R, T): a(f"v_add_f32 v{x}, 1.0, v{x}")
        for r, x in zip(R, T): a(f"v_rcp_f32 v{x}, v{x}")
        a("s_nop 0")
        for r, x in zip(R, T): a(f"v_mul_f32 v{r}, v{r}, v{x}")

def ln1(a):
    t = vT
    c, r = t, t + 1
    a(f"v_and_b32 v{c}, 7, v{vL}")
    a(f"v_lshrrev_b32 v{r}, 3, v{vL}")
    a(f"s_lshl_b32 s{sT}, s{sI}, 6")
    a(f"s_lshl_b32 s{sT+1}, s{sW}, 3")
    a(f"s_add_u32 s{sT}, s{sT}, s{sT+1}")
    a(f"v_add_u32 v{t+2}, s{sT}, v{r}")
    a(f"v_lshlrev_b32 v{t+2}, 10, v{t+2}")
    a(f"v_lshl_add_u32 v{t+2}, v{c}, 4, v{t+2}")
    for u in range(8):
        a.vmem(f"buffer_load_dwordx4 {vr(XS+4*u,4)}, v{t+2}, s[{sX}:{sX+3}], 0 offen offset:{u*128}", 'x')

def ln1_compute(a):
    t = vT
    c, r = t, t + 1
    s, q, ones = t + 3, t + 4, t + 5
    a(f"v_mov_b32 v{ones}, 0x3f803f80")
    a(f"v_mov_b32 v{s}, 0")
    a(f"v_mov_b32 v{q}, 0")
    a(f"v_mov_b32 v{t+6}, 0")
    a(f"v_mov_b32 v{t+7}, 0")
    a.wait(vm='x')
    for k in range(0, 32, 2):
        a(f"v_dot2_f32_bf16 v{s}, v{XS+k}, v{ones}, v{s}")
        a(f"v_dot2_f32_bf16 v{q}, v{XS+k}, v{XS+k}, v{q}")
        a(f"v_dot2_f32_bf16 v{t+6}, v{XS+k+1}, v{ones}, v{t+6}")
        a(f"v_dot2_f32_bf16 v{t+7}, v{XS+k+1}, v{XS+k+1}, v{t+7}")
    a("s_nop 1")
    a(f"v_add_f32 v{s}, v{s}, v{t+6}")
    a(f"v_add_f32 v{q}, v{q}, v{t+7}")
    for pat in ("quad_perm:[1,0,3,2]", "quad_perm:[2,3,0,1]", "row_half_mirror"):
        a("s_nop 1")
        a(f"v_add_f32_dpp v{s}, v{s}, v{s} {pat} row_mask:0xf bank_mask:0xf")
        a(f"v_add_f32_dpp v{q}, v{q}, v{q} {pat} row_mask:0xf bank_mask:0xf")
    a("s_nop 0")
    a(f"v_mul_f32 v{s}, {f2u(1/512)}, v{s}")
    a(f"v_mul_f32 v{q}, {f2u(1/512)}, v{q}")
    a(f"v_fma_f32 v{q}, -v{s}, v{s}, v{q}")
    a(f"v_max_f32 v{q}, 0, v{q}")
    a(f"v_add_f32 v{q}, {f2u(1e-5)}, v{q}")
    a(f"v_rsq_f32 v{q}, v{q}")
    a("s_nop 0")
    a(f"v_mul_f32 v{s}, v{s}, v{q}")
    a(f"v_sub_f32 v{s}, 0, v{s}")
    for k in range(32):
        x = XS + k
        a(f"v_lshlrev_b32 v{t+6}, 16, v{x}")
        a(f"v_and_b32 v{t+7}, 0xffff0000, v{x}")
        a(f"v_fma_f32 v{t+6}, v{t+6}, v{q}, v{s}")
        a(f"v_fma_f32 v{t+7}, v{t+7}, v{q}, v{s}")
        a(f"v_cvt_pk_bf16_f32 v{x}, v{t+6}, v{t+7}")
    a(f"s_and_b32 s{sT}, s{sW}, 3")
    a(f"s_lshl_b32 s{sT}, s{sT}, 3")
    a(f"v_add_u32 v{t+6}, s{sT}, v{r}")
    a(f"v_xor_b32 v{t+6}, v{t+6}, v{c}")
    a(f"v_lshlrev_b32 v{t+6}, 4, v{t+6}")
    a(f"v_lshrrev_b32 v{t+7}, 1, v{c}")
    a(f"v_lshl_add_u32 v{t+6}, v{t+7}, 10, v{t+6}")
    a(f"v_and_b32 v{t+7}, 1, v{c}")
    a(f"v_lshl_add_u32 v{t+6}, v{t+7}, 9, v{t+6}")
    a(f"s_lshl_b32 s{sT}, s{sNB}, 15")
    a(f"s_add_u32 s{sT}, s{sT}, {LDS_XN}")
    a(f"v_add_u32 v{t+6}, s{sT}, v{t+6}")
    for u in range(8):
        a.ds(f"ds_write_b128 v{t+6}, {vr(XS+4*u,4)} offset:{u*4096}", 'xw')

def dma_stage(a, st):
    base = slot_addr(st['slot'])
    ty = st['type']
    if ty == 'z':
        for d in range(2):
            a(f"s_add_u32 s{sSoff}, s{sT+8}, {(st['k0'] + 4*d) * 3584 + st['colb']}")
            a(f"s_add_u32 m0, s{sT+10}, {base + d*1024}")
            a("s_nop 0")
            a.vmem(f"buffer_load_dwordx4 v{vZsrc}, s[{sWIN}:{sWIN+3}], s{sSoff} offen lds", ('D', st['n']))
    elif ty == 'q':
        for d in range(2):
            a(f"s_add_u32 s{sSoff}, s{sT+9}, {(st['k0'] + 8*d) * 1024}")
            a(f"s_add_u32 m0, s{sT+10}, {base + d*1024}")
            a("s_nop 0")
            a.vmem(f"buffer_load_dwordx4 v{vQsrc}, s[{sWQ}:{sWQ+3}], s{sSoff} offen lds", ('D', st['n']))
    elif ty == 'kv':
        for d in range(2):
            a(f"s_add_u32 m0, s{sT+10}, {base + d*1024}")
            off = (st['k0'] + 16 * d) * 32
            a(f"v_add_co_u32 v{vT+14}, vcc, {off}, v{vT+12}")
            a(f"s_nop 1")
            a(f"v_addc_co_u32 v{vT+15}, vcc, 0, v{vT+13}, vcc")
            a.vmem(f"global_load_lds_dwordx4 v[{vT+14}:{vT+15}], off", ('D', st['n']))

def reads(a, st, step, buf, role):
    slot = st['slot']; ty = st['type']
    for k in range(4):
        ks = 4 * step + k
        for sec in range(2):
            if ty == 'z':
                va = vAz2 if slot == 4 else vAz; off = (0 if slot == 4 else slot * 16384) + (4 * ks + sec) * 1024
            elif ty == 'q':
                va = vAq2 if slot == 4 else vAq; off = (0 if slot == 4 else slot * 16384) + (4 * ks + sec) * 512
            else:
                va = vAz2 if slot == 4 else vAz; off = (0 if slot == 4 else slot * 16384) + (4 * ks + sec) * 256
            a.ds(f"ds_read_b64_tr_b16 {vr(buf + 4*k + 2*sec, 2)}, v{va} offset:{off}", 'rd')

def xn_reads(a, ks0, dst):
    for k in range(4):
        ks = ks0 + k
        a.ds(f"ds_read_b128 {vr(dst + 4*k, 4)}, v{vX0 + ks % 4} offset:{(ks // 4) * 4096 + (ks % 4) * 1024}", 'rd')

def pack16(a, base, dst):
    for q in range(8): a(f"v_cvt_pk_bf16_f32 v{dst+q}, v{base+2*q}, v{base+2*q+1}")

def tok_addr(a):
    pass

def epi_z2_part1(a):
    a.c("z2 epilogue 1: gelu + partial stats")
    a("s_nop 7"); a("s_nop 7")
    gelu(a, ZV, 16, vT)
    s, q = vT, vT + 1
    a(f"v_add_f32 v{s}, v{ZV}, v{ZV+1}")
    a(f"v_mul_f32 v{q}, v{ZV}, v{ZV}")
    a(f"v_fmac_f32 v{q}, v{ZV+1}, v{ZV+1}")
    for k in range(2, 16):
        a(f"v_add_f32 v{s}, v{s}, v{ZV+k}")
        a(f"v_fmac_f32 v{q}, v{ZV+k}, v{ZV+k}")
    a(f"v_mov_b32 v{vT+2}, v{s}")
    a(f"v_mov_b32 v{vT+3}, v{q}")
    a("s_nop 1")
    a(f"v_permlane32_swap_b32 v{s}, v{vT+2}")
    a(f"v_permlane32_swap_b32 v{q}, v{vT+3}")
    a("s_nop 1")
    a(f"v_add_f32 v{s}, v{s}, v{vT+2}")
    a(f"v_add_f32 v{q}, v{q}, v{vT+3}")
    a(f"s_lshl_b32 s{sT}, s{sCG}, 9")
    a(f"s_lshl_b32 s{sT+1}, s{sNB}, 8")
    a(f"s_add_u32 s{sT}, s{sT}, s{sT+1}")
    a(f"s_add_u32 s{sT}, s{sT}, {LDS_STAT}")
    a(f"v_lshlrev_b32 v{vT+2}, 3, v{vN}")
    a(f"v_add_u32 v{vT+2}, s{sT}, v{vT+2}")
    a.ds(f"ds_write_b64 v{vT+2}, {vr(s,2)}", 'sw')
    a.wait(lg='sw')

def publish_stats(a, L):
    a(f"s_cmp_eq_u32 s{sW}, 0")
    a(f"s_cbranch_scc0 {L}_pub")
    a(f"v_lshlrev_b32 v{vT}, 3, v{vL}")
    a(f"v_add_u32 v{vT+1}, {LDS_STAT}, v{vT}")
    for g in range(4): a(f"ds_read_b64 {vr(vT+2+2*g,2)}, v{vT+1} offset:{g*512}")
    a("s_waitcnt lgkmcnt(0)")
    for g in range(1, 4):
        a(f"v_add_f32 v{vT+2}, v{vT+2}, v{vT+2+2*g}")
        a(f"v_add_f32 v{vT+3}, v{vT+3}, v{vT+3+2*g}")
    a(f"s_mul_i32 s{sT}, s{sI}, 7")
    a(f"s_add_u32 s{sT}, s{sT}, s{sJ}")
    a(f"s_lshl_b32 s{sT}, s{sT}, 9")
    a(f"s_add_u32 s{sT}, s{sT}, {WS_ST}")
    a(f"buffer_store_dwordx2 {vr(vT+2,2)}, v{vT}, s[{sWS}:{sWS+3}], s{sT} offen sc1")
    a("s_waitcnt vmcnt(0)")
    a(f"s_lshl_b32 s{sT}, s{sI}, 2")
    a(f"v_mov_b32 v{vT}, s{sT}")
    a(f"v_mov_b32 v{vT+1}, 1")
    a("s_mov_b64 exec, 1")
    a(f"global_atomic_add v{vT}, v{vT+1}, s[{sDBG}:{sDBG+1}] sc1")
    a("s_mov_b64 exec, -1")
    a("s_waitcnt vmcnt(0)")
    a.label(f"{L}_pub")

def epi_z1(a):
    a.c("z1 epilogue")
    a("s_nop 7"); a("s_nop 7")
    gelu(a, A1, 16, vT)
    pack16(a, A1, vT)
    a(f"s_lshl_b32 s{sT}, s{sI}, 1")
    a(f"s_add_u32 s{sT}, s{sT}, s{sNB}")
    a(f"s_mul_i32 s{sT}, s{sT}, 28")
    a(f"s_lshl_b32 s{sT+1}, s{sJ}, 2")
    a(f"s_add_u32 s{sT}, s{sT}, s{sT+1}")
    a(f"s_add_u32 s{sT}, s{sT}, s{sCG}")
    a(f"s_lshl_b32 s{sT}, s{sT}, 11")
    a(f"s_add_u32 s{sT}, s{sT}, {WS_Z1}")
    a(f"v_lshlrev_b32 v{vT+8}, 4, v{vL}")
    a.vmem(f"buffer_store_dwordx4 {vr(vT,4)}, v{vT+8}, s[{sWS}:{sWS+3}], s{sT} offen", 'st')
    a.vmem(f"buffer_store_dwordx4 {vr(vT+4,4)}, v{vT+8}, s[{sWS}:{sWS+3}], s{sT} offen offset:1024", 'st')
    a("s_nop 1")

def epi_q(a):
    a.c("q epilogue")
    a("s_nop 7"); a("s_nop 7")
    a(f"s_mov_b32 s{sT}, {f2u(QSCALE)}")
    for k in range(16): a(f"v_mul_f32 v{AQ+k}, s{sT}, v{AQ+k}")
    pack16(a, AQ, vT)
    a(f"s_lshl_b32 s{sT}, s{sI}, 1")
    a(f"s_add_u32 s{sT}, s{sT}, s{sNB}")
    a(f"s_lshl_b32 s{sT}, s{sT}, 5")
    a(f"s_lshl_b32 s{sT+1}, s{sJ}, 2")
    a(f"s_add_u32 s{sT}, s{sT}, s{sT+1}")
    a(f"s_and_b32 s{sT+1}, s{sW}, 1")
    a(f"s_lshl_b32 s{sT+1}, s{sT+1}, 1")
    a(f"s_add_u32 s{sT}, s{sT}, s{sT+1}")
    a(f"s_lshl_b32 s{sT}, s{sT}, 10")
    a(f"s_add_u32 s{sT}, s{sT}, {WS_QF}")
    a(f"v_lshlrev_b32 v{vT+8}, 4, v{vL}")
    a(f"buffer_store_dwordx4 {vr(vT,4)}, v{vT+8}, s[{sWS}:{sWS+3}], s{sT} offen")
    a(f"buffer_store_dwordx4 {vr(vT+4,4)}, v{vT+8}, s[{sWS}:{sWS+3}], s{sT} offen offset:1024")

def epi_kv(a):
    a.c("kv epilogue")
    a("s_nop 7"); a("s_nop 7")
    pack16(a, AQ, vT)
    a(f"s_lshl_b32 s{sT}, s{sI}, 1")
    a(f"s_add_u32 s{sT}, s{sT}, s{sNB}")
    a(f"s_lshl_b32 s{sT}, s{sT}, 10")
    a(f"s_add_u32 s{sT+1}, s{sT}, {WS_KF}")
    a(f"s_add_u32 s{sT+2}, s{sT}, {WS_VF}")
    a(f"v_lshlrev_b32 v{vT+8}, 4, v{vL}")
    a(f"buffer_store_dwordx4 {vr(vT,4)}, v{vT+8}, s[{sWS}:{sWS+3}], s{sT+1} offen")
    a(f"s_mul_i32 s{sT+3}, s{sW}, 1280")
    a(f"s_add_u32 s{sT+3}, s{sT+3}, {LDS_MISC + 4096}")
    a(f"v_mul_u32_u24 v{vT+9}, 40, v{vN}")
    a(f"v_lshl_add_u32 v{vT+9}, v{vH}, 3, v{vT+9}")
    a(f"v_add_u32 v{vT+9}, s{sT+3}, v{vT+9}")
    a(f"ds_write_b64 v{vT+9}, {vr(vT+4,2)}")
    a(f"ds_write_b64 v{vT+9}, {vr(vT+6,2)} offset:16")
    a(f"v_lshrrev_b32 v{vT+10}, 4, v{vL}")
    a(f"v_lshrrev_b32 v{vT+11}, 1, v{vT+10}")
    a(f"v_and_b32 v{vT+10}, 1, v{vT+10}")
    a(f"v_lshlrev_b32 v{vT+11}, 4, v{vT+11}")
    a(f"v_lshl_add_u32 v{vT+11}, v{vT+10}, 2, v{vT+11}")
    a(f"v_bfe_u32 v{vT+10}, v{vL}, 2, 2")
    a(f"v_add_u32 v{vT+11}, v{vT+11}, v{vT+10}")
    a(f"v_mul_u32_u24 v{vT+11}, 40, v{vT+11}")
    a(f"v_and_b32 v{vT+10}, 3, v{vL}")
    a(f"v_lshl_add_u32 v{vT+11}, v{vT+10}, 3, v{vT+11}")
    a(f"v_add_u32 v{vT+11}, s{sT+3}, v{vT+11}")
    a("s_waitcnt lgkmcnt(0)")
    a(f"ds_read_b64_tr_b16 {vr(vT+4,2)}, v{vT+11}")
    a(f"ds_read_b64_tr_b16 {vr(vT+6,2)}, v{vT+11} offset:{8*40}")
    a("s_waitcnt lgkmcnt(0)")
    a(f"buffer_store_dwordx4 {vr(vT+4,4)}, v{vT+8}, s[{sWS}:{sWS+3}], s{sT+2} offen")

def epi_z2_part2(a, L):
    a.c("stats exchange + z2 normalisation")
    a(f"s_cmp_eq_u32 s{sW}, 0")
    a(f"s_cbranch_scc0 {L}_w")
    a(f"s_lshl_b32 s{sT}, s{sI}, 2")
    a(f"v_mov_b32 v{vT}, s{sT}")
    a(f"s_mov_b32 s{sT+2}, 0")
    a.label(f"{L}_poll")
    a(f"global_load_dword v{vT+1}, v{vT}, s[{sDBG}:{sDBG+1}] sc1")
    a("s_waitcnt vmcnt(0)")
    a(f"v_readfirstlane_b32 s{sT+1}, v{vT+1}")
    a("s_nop 3")
    a(f"s_cmp_ge_u32 s{sT+1}, 7")
    a(f"s_cbranch_scc1 {L}_got")
    a("s_sleep 1")
    a(f"s_add_u32 s{sT+2}, s{sT+2}, 1")
    a(f"s_cmp_lt_u32 s{sT+2}, 100000")
    a(f"s_cbranch_scc1 {L}_poll")
    a.label(f"{L}_got")
    a(f"s_mul_i32 s{sT}, s{sI}, {7*512}")
    a(f"s_add_u32 s{sT}, s{sT}, {WS_ST}")
    a(f"v_lshlrev_b32 v{vT}, 3, v{vL}")
    for g in range(7): a(f"buffer_load_dwordx2 {vr(vT+2+2*g,2)}, v{vT}, s[{sWS}:{sWS+3}], s{sT} offen offset:{g*512} sc1")
    a("s_waitcnt vmcnt(0)")
    for g in range(1, 7):
        a(f"v_add_f32 v{vT+2}, v{vT+2}, v{vT+2+2*g}")
        a(f"v_add_f32 v{vT+3}, v{vT+3}, v{vT+3+2*g}")
    a(f"v_mul_f32 v{vT+2}, {f2u(1/896)}, v{vT+2}")
    a(f"v_mul_f32 v{vT+3}, {f2u(1/896)}, v{vT+3}")
    a(f"v_fma_f32 v{vT+3}, -v{vT+2}, v{vT+2}, v{vT+3}")
    a(f"v_max_f32 v{vT+3}, 0, v{vT+3}")
    a(f"v_add_f32 v{vT+3}, {f2u(1e-5)}, v{vT+3}")
    a(f"v_rsq_f32 v{vT+3}, v{vT+3}")
    a("s_nop 0")
    a(f"v_mul_f32 v{vT+2}, v{vT+2}, v{vT+3}")
    a(f"v_sub_f32 v{vT+2}, 0, v{vT+2}")
    a(f"v_add_u32 v{vT}, {LDS_MR}, v{vT}")
    a(f"ds_write_b64 v{vT}, {vr(vT+2,2)}")
    a("s_waitcnt lgkmcnt(0)")
    a.label(f"{L}_w")
    a("s_barrier")
    a(f"s_lshl_b32 s{sT}, s{sNB}, 8")
    a(f"s_add_u32 s{sT}, s{sT}, {LDS_MR}")
    a(f"v_lshlrev_b32 v{vT}, 3, v{vN}")
    a(f"v_add_u32 v{vT}, s{sT}, v{vT}")
    a(f"ds_read_b64 {vr(vT+2,2)}, v{vT}")
    a("s_waitcnt lgkmcnt(0)")
    for k in range(16): a(f"v_fma_f32 v{ZV+k}, v{ZV+k}, v{vT+3}, v{vT+2}")
    pack16(a, ZV, BUF0)
    a(f"s_mul_i32 s{sT+3}, s{sW}, 2304")
    a(f"s_add_u32 s{sT+3}, s{sT+3}, {LDS_TR}")
    a(f"v_mul_u32_u24 v{vT+4}, 72, v{vN}")
    a(f"v_lshl_add_u32 v{vT+4}, v{vH}, 3, v{vT+4}")
    a(f"v_add_u32 v{vT+4}, s{sT+3}, v{vT+4}")
    for g in range(4): a(f"ds_write_b64 v{vT+4}, {vr(BUF0+2*g,2)} offset:{16*g}")
    a(f"v_bfe_u32 v{vT+5}, v{vL}, 2, 2")
    a(f"v_lshl_add_u32 v{vT+5}, v{vH}, 3, v{vT+5}")
    a(f"v_mul_u32_u24 v{vT+5}, 72, v{vT+5}")
    a(f"v_bfe_u32 v{vT+6}, v{vL}, 4, 1")
    a(f"v_lshl_add_u32 v{vT+5}, v{vT+6}, 5, v{vT+5}")
    a(f"v_and_b32 v{vT+6}, 3, v{vL}")
    a(f"v_lshl_add_u32 v{vT+5}, v{vT+6}, 3, v{vT+5}")
    a(f"v_add_u32 v{vT+5}, s{sT+3}, v{vT+5}")
    a("s_waitcnt lgkmcnt(0)")
    for ks in range(2):
        a(f"ds_read_b64_tr_b16 {vr(BUF1+4*ks,2)}, v{vT+5} offset:{16*ks*72}")
        a(f"ds_read_b64_tr_b16 {vr(BUF1+4*ks+2,2)}, v{vT+5} offset:{(16*ks+4)*72}")
    a(f"s_lshl_b32 s{sT}, s{sJ}, 2")
    a(f"s_add_u32 s{sT}, s{sT}, s{sCG}")
    a(f"s_lshl_b32 s{sT}, s{sT}, 7")
    a(f"s_lshl_b32 s{sT+1}, s{sI}, 2")
    a(f"s_add_u32 s{sT}, s{sT}, s{sT+1}")
    a(f"s_lshl_b32 s{sT+1}, s{sNB}, 1")
    a(f"s_add_u32 s{sT}, s{sT}, s{sT+1}")
    a(f"s_lshl_b32 s{sT}, s{sT}, 10")
    a(f"s_add_u32 s{sT}, s{sT}, {WS_Z2}")
    a(f"v_lshlrev_b32 v{vT+8}, 4, v{vL}")
    a("s_waitcnt lgkmcnt(0)")
    a(f"buffer_store_dwordx4 {vr(BUF1,4)}, v{vT+8}, s[{sWS}:{sWS+3}], s{sT} offen")
    a(f"buffer_store_dwordx4 {vr(BUF1+4,4)}, v{vT+8}, s[{sWS}:{sWS+3}], s{sT} offen offset:1024")

def run_stages(a, L, stages, jl7):
    DIST = 4
    steps = []
    for n, st in enumerate(stages):
        nsteps = {'z': 1, 'q': 2, 'kv': 4}[st['type']]
        for s in range(nsteps): steps.append(dict(st=st, step=s, first=(s == 0)))
    kcount = {}
    for sp in steps:
        p = sp['st']['pass']
        sp['ks0'] = kcount.get(p, 0); kcount[p] = sp['ks0'] + 4
    def role_guard(p):
        return {'z2': None, 'z1': None, 'q': sQW, 'kv': sQW + 2}[p]
    prev = None
    for t, sp in enumerate(steps + [None]):
        if sp is not None and sp['first']:
            n = sp['st']['n']
            a.c(f"==== stage {n} ({sp['st']['type']}/{sp['st']['pass']}) ====")
            a.wait(vm=('D', n))
            a("s_barrier")
            if n + DIST < len(stages): dma_stage(a, stages[n + DIST])
            if sp['st'].get('publish'): publish_stats(a, L)
        buf = BUF0 if t % 2 == 0 else BUF1
        pbuf = BUF1 if t % 2 == 0 else BUF0
        def do_reads():
            p = sp['st']['pass']
            reads(a, sp['st'], sp['step'], buf, None)
            if p == 'z2' or jl7: xn_reads(a, sp['ks0'], XN + 4 * sp['ks0'])
        def do_mfma():
            p = prev['st']['pass']
            acc = {'z2': ZV, 'z1': A1, 'q': AQ, 'kv': AQ}[p]
            for k in range(4):
                ks = prev['ks0'] + k
                mfma(a, acc, pbuf + 4 * k, XN + 4 * ks, None if ks == 0 else acc)
        gr = role_guard(sp['st']['pass']) if sp is not None else None
        gm = role_guard(prev['st']['pass']) if prev is not None else None
        lg_save = a.lg.copy()
        if sp is not None:
            if gr is not None:
                a(f"s_cmp_eq_u32 s{gr}, 0"); a(f"s_cbranch_scc1 {L}_r{t}")
            do_reads()
            if gr is not None: a.label(f"{L}_r{t}")
        if prev is not None:
            if gm is not None:
                a(f"s_cmp_eq_u32 s{gm}, 0"); a(f"s_cbranch_scc1 {L}_m{t}")
            do_mfma()
            if gm is not None: a.label(f"{L}_m{t}")
        a.wait_all(vm=False, lg=True)
        if prev is not None and (sp is None or sp['st']['pass'] != prev['st']['pass']):
            p = prev['st']['pass']
            if p == 'z2': epi_z2_part1(a)
            elif p == 'z1': epi_z1(a)
            else:
                g = role_guard(p)
                a(f"s_cmp_eq_u32 s{g}, 0"); a(f"s_cbranch_scc1 {L}_e{t}")
                vm_save = a.vm.copy()
                if p == 'q': epi_q(a)
                else: epi_kv(a)
                a.label(f"{L}_e{t}")
        prev = sp

def gen_k1(name):
    a = Asm()
    a(f".globl {name}\n.p2align 8\n.type {name},@function")
    a.label(name)
    a("s_cmp_ge_u32 s2, 256")
    a(f"s_cbranch_scc1 {name}_exit")
    a(f"s_load_dwordx2 s[{sX}:{sX+1}], s[0:1], 0")
    a(f"s_load_dwordx2 s[{sWQ}:{sWQ+1}], s[0:1], 8")
    a(f"s_load_dwordx4 s[{sWK}:{sWK+3}], s[0:1], 16")
    a(f"s_load_dwordx2 s[{sWIN}:{sWIN+1}], s[0:1], 48")
    a(f"s_load_dwordx2 s[{sDBG}:{sDBG+1}], s[0:1], 88")
    a(f"s_load_dwordx2 s[{sWS}:{sWS+1}], s[0:1], 96")
    a(f"v_readfirstlane_b32 s{sW}, v0")
    a(f"v_and_b32 v{vL}, 63, v0")
    a(f"v_lshrrev_b32 v{vH}, 5, v{vL}")
    a(f"v_and_b32 v{vN}, 31, v0")
    a(f"s_lshr_b32 s{sW}, s{sW}, 6")
    a(f"s_and_b32 s{sI}, s2, 7")
    a(f"s_lshl_b32 s{sI}, s{sI}, 2")
    a(f"s_bfe_u32 s{sT}, s2, 0x20003")
    a(f"s_add_u32 s{sI}, s{sI}, s{sT}")
    a(f"s_lshr_b32 s{sJ}, s2, 5")
    a(f"s_lshr_b32 s{sNB}, s{sW}, 2")
    a(f"s_and_b32 s{sCG}, s{sW}, 3")
    a(f"s_mov_b32 s{sC1}, {f2u(GELU_C1)}")
    a(f"v_mov_b32 v{vC0}, {f2u(GELU_C0)}")
    a(f"s_lshl_b32 s{sT}, 1, s{sW}")
    a(f"s_and_b32 s{sQW}, s{sT}, 0xc3")
    a(f"s_and_b32 s{sQW+2}, s{sT}, 0x24")
    a("s_waitcnt lgkmcnt(0)")
    for (s, size) in ((sX, 2048*512*2), (sWIN, 512*1792*2), (sWQ, 512*512*2), (sWS, WS_END)):
        a(f"s_mov_b32 s{s+2}, {size}")
        a(f"s_mov_b32 s{s+3}, 0x00020000")
    ln1(a)
    t = vT + 8
    r, c16, un = t, t + 1, t + 2
    a(f"v_bfe_u32 v{r}, v{vL}, 2, 2")
    a(f"v_and_b32 v{c16}, 3, v{vL}")
    a(f"v_lshrrev_b32 v{un}, 4, v{vL}")
    a(f"s_lshl_b32 s{sT}, s{sW}, 3")
    a(f"v_add_u32 v{vZsrc}, s{sT}, v{r}")
    a(f"v_mul_u32_u24 v{vZsrc}, 3584, v{vZsrc}")
    a(f"v_lshl_add_u32 v{vZsrc}, v{un}, 6, v{vZsrc}")
    a(f"v_lshl_add_u32 v{vZsrc}, v{c16}, 4, v{vZsrc}")
    a(f"v_lshrrev_b32 v{t+3}, 1, v{un}")
    a(f"v_lshl_add_u32 v{t+3}, v{t+3}, 2, v{r}")
    a(f"s_lshl_b32 s{sT}, s{sW}, 4")
    a(f"v_add_u32 v{t+3}, s{sT}, v{t+3}")
    a(f"v_lshlrev_b32 v{vQsrc}, 10, v{t+3}")
    a(f"v_and_b32 v{t+3}, 1, v{un}")
    a(f"v_lshl_add_u32 v{vQsrc}, v{t+3}, 6, v{vQsrc}")
    a(f"v_lshl_add_u32 v{vQsrc}, v{c16}, 4, v{vQsrc}")
    a(f"s_lshl_b32 s{sT+8}, s{sJ}, 8")
    a(f"s_lshl_b32 s{sT+9}, s{sJ}, 7")
    a(f"s_lshl_b32 s{sT+10}, s{sW}, 11")
    cm = t + 3
    a(f"v_lshlrev_b32 v{cm}, 6, v{r}")
    a(f"v_and_b32 v{t+4}, 1, v{un}")
    a(f"v_lshl_add_u32 v{cm}, v{t+4}, 5, v{cm}")
    a(f"v_lshl_add_u32 v{cm}, v{c16}, 3, v{cm}")
    a(f"v_lshlrev_b32 v{vAz}, 11, v{vH}")
    a(f"s_lshl_b32 s{sT}, s{sCG}, 8")
    a(f"v_add3_u32 v{vAz}, v{vAz}, s{sT}, v{cm}")
    a(f"v_lshlrev_b32 v{vAq}, 10, v{vH}")
    a(f"s_and_b32 s{sT}, s{sW}, 1")
    a(f"s_lshl_b32 s{sT}, s{sT}, 8")
    a(f"v_add3_u32 v{vAq}, v{vAq}, s{sT}, v{cm}")
    a(f"v_add_u32 v{vAq2}, {LDS_S4}, v{vAq}")
    a(f"s_lshl_b32 s{sT}, s{sNB}, 15")
    a(f"s_add_u32 s{sT}, s{sT}, {LDS_XN}")
    for k in range(4):
        a(f"v_add_u32 v{t+4}, {2*k}, v{vH}")
        a(f"v_xor_b32 v{t+4}, v{t+4}, v{vN}")
        a(f"v_lshlrev_b32 v{t+4}, 4, v{t+4}")
        a(f"v_lshl_add_u32 v{t+4}, v{vH}, 9, v{t+4}")
        a(f"v_add_u32 v{vX0+k}, s{sT}, v{t+4}")
    a(f"s_cmp_eq_u32 s{sJ}, 7")
    a(f"s_cbranch_scc1 {name}_j7")
    vm0, lg0 = a.vm.copy(), a.lg.copy()
    a(f"v_add_u32 v{vAz2}, {LDS_S4}, v{vAz}")
    stages = []
    for n in range(8): stages.append(dict(type='z', k0=64*n, colb=896*2, n=n, slot=n % 5, **{'pass': 'z2'}))
    for n in range(8): stages.append(dict(type='z', k0=64*n, colb=0, n=8+n, slot=(8+n) % 5, **{'pass': 'z1'}))
    for n in range(4): stages.append(dict(type='q', k0=128*n, n=16+n, slot=(16+n) % 5, **{'pass': 'q'}))
    stages[10]['publish'] = True
    for n in range(4): dma_stage(a, stages[n])
    ln1_compute(a)
    a.wait(lg='xw')
    run_stages(a, name + "_a", stages, False)
    epi_z2_part2(a, name + "_a")
    a("s_waitcnt vmcnt(0)")
    a("s_endpgm")
    a.label(f"{name}_j7")
    a.vm, a.lg = vm0, lg0
    a(f"v_lshlrev_b32 v{vAz}, 9, v{vH}")
    a(f"v_add_u32 v{vAz}, v{vAz}, v{cm}")
    a(f"v_add_u32 v{vAz2}, {LDS_S4}, v{vAz}")
    a(f"v_lshl_add_u32 v{t+8}, v{un}, 2, v{r}")
    a(f"s_lshl_b32 s{sT}, s{sW}, 5")
    a(f"v_add_u32 v{t+8}, s{sT}, v{t+8}")
    a(f"v_lshlrev_b32 v{t+8}, 5, v{t+8}")
    a(f"v_and_b32 v{t+9}, 1, v{c16}")
    a(f"v_lshl_add_u32 v{t+8}, v{t+9}, 4, v{t+8}")
    a(f"v_cmp_gt_u32 vcc, 2, v{c16}")
    a(f"v_mov_b32 v{vT+12}, s{sWV}")
    a(f"v_mov_b32 v{vT+13}, s{sWV+1}")
    a(f"v_mov_b32 v{vT+14}, s{sWK}")
    a(f"v_mov_b32 v{vT+15}, s{sWK+1}")
    a(f"v_cndmask_b32 v{vT+12}, v{vT+12}, v{vT+14}, vcc")
    a(f"v_cndmask_b32 v{vT+13}, v{vT+13}, v{vT+15}, vcc")
    a(f"v_add_co_u32 v{vT+12}, vcc, v{vT+12}, v{t+8}")
    a("s_nop 1")
    a(f"v_addc_co_u32 v{vT+13}, vcc, 0, v{vT+13}, vcc")
    stages = []
    for n in range(2): stages.append(dict(type='kv', k0=256*n, n=n, slot=n % 5, **{'pass': 'kv'}))
    for n in range(4): stages.append(dict(type='q', k0=128*n, n=2+n, slot=(2+n) % 5, **{'pass': 'q'}))
    for n in range(4): dma_stage(a, stages[n])
    ln1_compute(a)
    a.wait(lg='xw')
    run_stages(a, name + "_b", stages, True)
    a("s_waitcnt vmcnt(0)")
    a.label(f"{name}_exit")
    a("s_endpgm")
    return a.text()
```

```python
from asm import *
from layout import *

Q0, Q1 = 4, 8
KF = 12
V0, V1 = 16, 20
P = 24
W0, W1 = 32, 36
vWsrc, vKVsrc, vZsrc = 40, 41, 42
vKrd, vVrd, vWA0, vWA1 = 43, 44, 45, 46
vT = 47
S0, S1 = 48, 64
NM0, NM1 = 80, 96
O0, O1 = 112, 128
G0, G1 = 144, 160
Z = 176
T0 = 208
sWS, sWSP = 4, 8
sI, sJ, sW, sKP, sQP = 16, 17, 18, 19, 20
sWoff, sKVoff, sZoff, sDma, sMW, sMKV, sTog, sCnt = 21, 22, 23, 24, 25, 26, 27, 28
sM16 = 30
sBSP = 32
sT = 36
SLOT = 12288
HALF = 4 * SLOT

STAMP = False
CFG = dict(barrier=1, lds=1, vmem=1, g=1, prio=0, zero=0)
sST = 60
def stamp(a, k):
    if STAMP:
        a(f"s_memtime s[{sST+2*k}:{sST+2*k+1}]")
def stamp_out(a):
    if STAMP:
        a(f"s_memrealtime s[{sST+10}:{sST+11}]")
        a("s_waitcnt lgkmcnt(0)")
        a(f"s_lshl_b32 s{sT+6}, s2, 3")
        a(f"s_add_u32 s{sT+6}, s{sT+6}, s{sW}")
        a(f"s_lshl_b32 s{sT+6}, s{sT+6}, 5")
        a(f"s_add_u32 s{sT+6}, s{sT+6}, {WS_END}")
        for k in range(5):
            a(f"s_sub_u32 s{sT+7}, s{sST+2*k}, s{sST}")
            a(f"v_mov_b32 v{T0+24+k}, s{sT+7}")
        a(f"v_mov_b32 v{T0+29}, s{sST+10}")
        a(f"v_mov_b32 v{T0+30}, s{sST+12}")
        a(f"v_mov_b32 v{T0+31}, 0")
        a(f"v_mov_b32 v{T0+23}, 0")
        a("s_mov_b64 exec, 1")
        a(f"buffer_store_dwordx4 {vr(T0+24,4)}, v{T0+23}, s[{sWS}:{sWS+3}], s{sT+6} offen")
        a(f"buffer_store_dwordx4 {vr(T0+28,4)}, v{T0+23}, s[{sWS}:{sWS+3}], s{sT+6} offen offset:16")
        a("s_waitcnt vmcnt(0)")

def mfma(a, D, A, B, C):
    c = "0" if C is None else vr(C, 16)
    a(f"v_mfma_f32_32x32x16_bf16 {vr(D,16)}, {vr(A,4)}, {vr(B,4)}, {c}")

def dma_kv(a, tag):
    a.vmem(f"buffer_load_dwordx4 v{vKVsrc}, s[{sWS}:{sWS+3}], s{sKVoff} offen lds", tag)
def dma_w(a, tag):
    a.vmem(f"buffer_load_dwordx4 v{vWsrc}, s[{sWSP}:{sWSP+3}], s{sWoff} offen lds", tag)
def advance_dma(a):
    a(f"s_add_u32 s{sDma}, s{sDma}, {SLOT}")
    a(f"s_cmp_eq_u32 s{sDma}, {8*SLOT}")
    a(f"s_cselect_b32 s{sDma}, 0, s{sDma}")

def stage(a, u, x_tag, gemm, do_dma, do_z, last, cfg):
    off = u * SLOT
    class Wrap:
        def __init__(s_, a): s_.a = a
        def __call__(s_, t=""):
            if not CFG['g'] and 'v_mfma' in t and (f"v[{G0}:" in t.split(',')[0] or f"v[{G1}:" in t.split(',')[0]): return
            s_.a(t)
        def c(s_, t): s_.a.c(t)
        def ds(s_, t, tag):
            if CFG['lds']: s_.a.ds(t, tag)
        def vmem(s_, t, tag):
            if CFG['vmem']: s_.a.vmem(t, tag)
        def wait(s_, **k): s_.a.wait(**k)
    a = Wrap(a)
    zk0, zk1 = Z + 8 * u, Z + 8 * u + 4
    x = x_tag
    def exps(S, lo, hi):
        for k in range(lo, hi): a(f"v_exp_f32 v{S+k}, v{S+k}")
    def ex(S, k): a(f"v_exp_f32 v{S+k}, v{S+k}")
    def cv(S, i): a(f"v_cvt_pk_bf16_f32 v{P+i}, v{S+2*i}, v{S+2*i+1}")
    a.c(f"---- stage u={u} ----")
    if CFG['barrier'] == 1 or (CFG['barrier'] > 1 and u % CFG['barrier'] == 0): a("s_barrier")
    a.wait(lg=('K', x))
    mfma(a, S1, KF, Q1, NM1)
    ex(S0, 0)
    a.ds(f"ds_read_b128 {vr(KF,4)}, v{vKrd} offset:{off}", ('K', x + 1)) if not last else None
    ex(S0, 1)
    if gemm: a.ds(f"ds_read_b128 {vr(W0,4)}, v{vWA0} offset:{off}", ('W', x, 0, 0))
    ex(S0, 2)
    if do_dma:
        if gemm:
            a(f"s_add_u32 m0, s{sDma}, s{sMW}")
    ex(S0, 3)
    if do_dma and gemm:
        dma_w(a, ('D', x + 6))
        a(f"s_add_u32 s{sWoff}, s{sWoff}, 128")
    mfma(a, O1, V1, P + 4, O1)
    if do_dma: a(f"s_add_u32 m0, s{sDma}, s{sMKV}")
    a(f"s_mov_b64 exec, s[{sM16}:{sM16+1}]")
    a.ds(f"ds_read_b128 {vr(V1,4)}, v{vVrd} offset:{off+1024}", ('V1', x))
    if do_dma:
        dma_kv(a, ('D', x + 6))
    a("s_mov_b64 exec, -1")
    ex(S0, 4)
    if do_dma:
        a(f"s_add_u32 s{sKVoff}, s{sKVoff}, 2048")
        advance_dma(a)
    ex(S0, 5)
    cv(S0, 0)
    ex(S0, 6)
    if gemm: a.ds(f"ds_read_b128 {vr(W1,4)}, v{vWA0} offset:{off+4096}", ('W', x, 1, 0))
    cv(S0, 1)
    ex(S0, 7)
    cv(S0, 2)
    if gemm:
        a.wait(vm=('Z', x, 0), lg=('W', x, 0, 0))
        mfma(a, G0, zk0, W0, G0)
    ex(S0, 8)
    cv(S0, 3)
    if gemm: a.ds(f"ds_read_b128 {vr(W0,4)}, v{vWA1} offset:{off}", ('W', x, 0, 1))
    ex(S0, 9)
    ex(S0, 10)
    ex(S0, 11)
    a.wait(lg=('V0', x))
    mfma(a, O0, V0, P, O0)
    ex(S0, 12)
    ex(S0, 13)
    cv(S0, 4)
    ex(S0, 14)
    cv(S0, 5)
    ex(S0, 15)
    cv(S0, 6)
    if gemm:
        a.wait(lg=('W', x, 1, 0))
        mfma(a, G1, zk0, W1, G1)
        if do_z:
            a.vmem(f"buffer_load_dwordx4 {vr(zk0,4)}, v{vZsrc}, s[{sWS}:{sWS+3}], s{sZoff} offen", ('Z', x + 4, 0))
    cv(S0, 7)
    if not last:
        a.wait(lg=('K', x + 1))
        mfma(a, S0, KF, Q0, NM0)
    ex(S1, 0)
    if gemm: a.ds(f"ds_read_b128 {vr(W1,4)}, v{vWA1} offset:{off+4096}", ('W', x, 1, 1))
    ex(S1, 1)
    ex(S1, 2)
    ex(S1, 3)
    a.wait(lg=('V1', x))
    mfma(a, O0, V1, P + 4, O0)
    ex(S1, 4)
    ex(S1, 5)
    cv(S1, 0)
    ex(S1, 6)
    cv(S1, 1)
    ex(S1, 7)
    cv(S1, 2)
    if gemm:
        a.wait(vm=('Z', x, 1), lg=('W', x, 0, 1))
        mfma(a, G0, zk1, W0, G0)
    ex(S1, 8)
    cv(S1, 3)
    ex(S1, 9)
    ex(S1, 10)
    ex(S1, 11)
    mfma(a, O1, V0, P, O1)
    if not last:
        a(f"s_mov_b64 exec, s[{sM16}:{sM16+1}]")
        a.ds(f"ds_read_b128 {vr(V0,4)}, v{vVrd} offset:{off}", ('V0', x + 1))
        a("s_mov_b64 exec, -1")
    ex(S1, 12)
    ex(S1, 13)
    cv(S1, 4)
    ex(S1, 14)
    cv(S1, 5)
    ex(S1, 15)
    cv(S1, 6)
    if gemm:
        a.wait(lg=('W', x, 1, 1))
        mfma(a, G1, zk1, W1, G1)
        if do_z:
            a.vmem(f"buffer_load_dwordx4 {vr(zk1,4)}, v{vZsrc}, s[{sWS}:{sWS+3}], s{sZoff} offen offset:1024", ('Z', x + 4, 1))
            a(f"s_add_u32 s{sZoff}, s{sZoff}, 4096")
    cv(S1, 7)
    a.wait(vm=('D', x + 1))

def toggle(a, gemm):
    regs = [vKrd, vVrd] + ([vWA0, vWA1] if gemm else [])
    for r in regs: a(f"v_add_u32 v{r}, s{sTog}, v{r}")
    a(f"s_sub_u32 s{sTog}, 0, s{sTog}")

def body(a, gemm, tag):
    L = tag
    def kv(x):
        a(f"s_add_u32 m0, s{sDma}, s{sMKV}")
        a(f"s_mov_b64 exec, s[{sM16}:{sM16+1}]")
        dma_kv(a, ('D', x))
        a("s_mov_b64 exec, -1")
        a(f"s_add_u32 s{sKVoff}, s{sKVoff}, 2048")
    def w(x):
        a(f"s_add_u32 m0, s{sDma}, s{sMW}")
        a("s_nop 0")
        dma_w(a, ('D', x))
        a(f"s_add_u32 s{sWoff}, s{sWoff}, 128")
    a(f"s_mov_b32 s{sDma}, {7*SLOT}")
    kv(-1)
    a(f"s_mov_b32 s{sDma}, 0")
    for x in (0, 1):
        if gemm: w(x)
        kv(x)
        advance_dma(a)
    for x in range(2, 6):
        if gemm: w(x)
        kv(x)
        advance_dma(a)
        if gemm:
            zk = Z + 8 * (x - 2)
            a.vmem(f"buffer_load_dwordx4 {vr(zk,4)}, v{vZsrc}, s[{sWS}:{sWS+3}], s{sZoff} offen", ('Z', x - 2, 0))
            a.vmem(f"buffer_load_dwordx4 {vr(zk+4,4)}, v{vZsrc}, s[{sWS}:{sWS+3}], s{sZoff} offen offset:1024", ('Z', x - 2, 1))
            a(f"s_add_u32 s{sZoff}, s{sZoff}, 4096")
    for r in range(16):
        a(f"v_mov_b32 v{O0+r}, 0"); a(f"v_mov_b32 v{O1+r}, 0")
        if gemm:
            a(f"v_mov_b32 v{G0+r}, 0"); a(f"v_mov_b32 v{G1+r}, 0")
    for r in range(4):
        a(f"v_mov_b32 v{V0+r}, 0x3f803f80"); a(f"v_mov_b32 v{V1+r}, 0x3f803f80"); a(f"v_mov_b32 v{P+4+r}, 0")
    a.wait(vm=[('Q',), ('D', -1), ('D', 0)])
    a("s_barrier")
    a(f"v_and_b32 v{T0}, 63, v0")
    a(f"v_lshlrev_b32 v{T0}, 4, v{T0}")
    a.ds(f"ds_read_b128 {vr(W0,4)}, v{T0} offset:{0}", 'dummy') if False else None
    a(f"v_add_u32 v{T0}, {7*SLOT + 8192}, v{T0}")
    a(f"v_add_u32 v{T0+1}, {7*SLOT}, v{vKrd}")
    a(f"v_add_u32 v{T0+2}, {7*SLOT}, v{vVrd}")
    a.ds(f"ds_read_b128 {vr(W0,4)}, v{T0}", 'K00')
    a.ds(f"ds_read_b128 {vr(KF,4)}, v{T0+1}", ('K', 0))
    a(f"s_mov_b64 exec, s[{sM16}:{sM16+1}]")
    a.ds(f"ds_read_b128 {vr(V0,4)}, v{T0+2}", ('V0', 0))
    a("s_mov_b64 exec, -1")
    a.wait(lg='K00')
    mfma(a, S0, W0, Q0, None)
    mfma(a, S1, W0, Q1, None)
    a("s_nop 7"); a("s_nop 7")
    for (S, NM) in ((S0, NM0), (S1, NM1)):
        t = T0 + 4
        a(f"v_max3_f32 v{t}, v{S}, v{S+1}, v{S+2}")
        for k in range(3, 15, 2): a(f"v_max3_f32 v{t}, v{t}, v{S+k}, v{S+k+1}")
        a(f"v_max_f32 v{t}, v{t}, v{S+15}")
        a(f"v_mov_b32 v{t+1}, v{t}")
        a("s_nop 1")
        a(f"v_permlane32_swap_b32 v{t}, v{t+1}")
        a("s_nop 1")
        a(f"v_max_f32 v{t}, v{t}, v{t+1}")
        for k in range(16): a(f"v_sub_f32 v{NM+k}, 0, v{t}")
    a.wait(lg=('K', 0))
    a("s_nop 1")
    mfma(a, S0, KF, Q0, NM0)
    a("s_nop 7"); a("s_nop 7")
    stamp(a, 1)
    if CFG['prio'] == 1:
        a(f"s_cmp_eq_u32 s{sKP}, 1")
        a(f"s_cbranch_scc0 {L}_np")
        a("s_setprio 1")
        a.label(f"{L}_np")
    a(f"s_mov_b32 s{sCnt}, 6")
    a(f"s_mov_b32 s{sTog}, {HALF}")
    a.label(f"{L}_loop")
    vm0, lg0 = a.vm.copy(), a.lg.copy()
    start = len(a.lines)
    for u in range(4): stage(a, u, u, gemm, True, True, False, None)
    toggle(a, gemm)
    txt1 = a.lines[start:]
    a2 = Asm(); a2.vm, a2.lg = a.vm.copy(), a.lg.copy()
    for u in range(4): stage(a2, u, 4 + u, gemm, True, True, False, None)
    toggle(a2, gemm)
    assert a2.lines == txt1, "steady state mismatch"
    a(f"s_sub_u32 s{sCnt}, s{sCnt}, 1")
    a(f"s_cmp_lg_u32 s{sCnt}, 0")
    a(f"s_cbranch_scc1 {L}_loop")
    def retag(q, d):
        out = []
        for t in q.items:
            if isinstance(t, tuple) and len(t) >= 2 and isinstance(t[1], int): out.append((t[0], t[1] + d) + tuple(t[2:]))
            else: out.append(t)
        q.items = out
    retag(a.vm, 20); retag(a.lg, 20)
    for u in range(4): stage(a, u, 24 + u, gemm, (24 + u) <= 25, True, False, None)
    toggle(a, gemm)
    for u in range(4): stage(a, u, 28 + u, gemm, False, False, (28 + u) == 31, None)
    stamp(a, 2)
    a("s_nop 1")
    mfma(a, O1, V1, P + 4, O1)

def finish(a, gemm, L):
    tb = sT
    a(f"s_lshl_b32 s{tb}, s{sI}, 1")
    a(f"s_add_u32 s{tb}, s{tb}, s{sKP}")
    a(f"v_and_b32 v{T0}, 63, v0")
    a(f"v_lshlrev_b32 v{T0+1}, 4, v{T0}")
    if gemm:
        a(f"s_mul_i32 s{sT+1}, s{tb}, 28")
        a(f"s_lshl_b32 s{sT+2}, s{sJ}, 2")
        a(f"s_add_u32 s{sT+1}, s{sT+1}, s{sT+2}")
        a(f"s_add_u32 s{sT+1}, s{sT+1}, s{sQP}")
        a(f"s_lshl_b32 s{sT+1}, s{sT+1}, 11")
        a(f"s_add_u32 s{sT+1}, s{sT+1}, {WS_Z1}")
        a.vmem(f"buffer_load_dwordx4 {vr(T0+8,4)}, v{T0+1}, s[{sWS}:{sWS+3}], s{sT+1} offen", 'z1')
        a.vmem(f"buffer_load_dwordx4 {vr(T0+12,4)}, v{T0+1}, s[{sWS}:{sWS+3}], s{sT+1} offen offset:1024", 'z1')
        a(f"v_and_b32 v{T0+2}, 31, v0")
        a(f"s_lshl_b32 s{sT+2}, s{tb}, 5")
        a(f"v_add_u32 v{T0+2}, s{sT+2}, v{T0+2}")
        a(f"v_lshlrev_b32 v{T0+2}, 1, v{T0+2}")
        a.vmem(f"buffer_load_ushort v{T0+3}, v{T0+2}, s[{sBSP}:{sBSP+3}], 0 offen", 'b')
    a("s_nop 7"); a("s_nop 7"); a("s_nop 7")
    a(f"s_mul_i32 s{sT+2}, s{sW}, 7168")
    a(f"v_add_u32 v{T0+4}, s{sT+2}, v{T0+1}")
    a(f"s_xor_b32 s{sT+3}, s{sW}, 4")
    a(f"s_mul_i32 s{sT+3}, s{sT+3}, 7168")
    a(f"v_add_u32 v{T0+5}, s{sT+3}, v{T0+1}")
    a(f"s_cmp_eq_u32 s{sKP}, 0")
    a(f"s_cbranch_scc0 {L}_x1")
    for (lab, On, Gn, Ok, Gk, Qk) in ((None, O1, G1, O0, G0, Q0), (f"{L}_x1", O0, G0, O1, G1, Q1)):
        if lab: a.label(lab)
        for q in range(3): a(f"ds_write_b128 v{T0+4}, {vr(On+4*q,4)} offset:{q*1024}")
        if gemm:
            for q in range(4): a(f"ds_write_b128 v{T0+4}, {vr(Gn+4*q,4)} offset:{(3+q)*1024}")
        for r in range(12): a(f"v_mov_b32 v{S0+r}, v{Ok+r}")
        if gemm:
            for r in range(16): a(f"v_mov_b32 v{S1+r}, v{Gk+r}")
        for r in range(4): a(f"v_mov_b32 v{KF+r}, v{Qk+r}")
        if not lab: a(f"s_branch {L}_x2")
    a.label(f"{L}_x2")
    a("s_waitcnt lgkmcnt(0)")
    a("s_barrier")
    for q in range(3): a(f"ds_read_b128 {vr(O0+4*q,4)}, v{T0+5} offset:{q*1024}")
    if gemm:
        for q in range(4): a(f"ds_read_b128 {vr(G0+4*q,4)}, v{T0+5} offset:{(3+q)*1024}")
    a("s_waitcnt lgkmcnt(0)")
    for r in range(9): a(f"v_add_f32 v{S0+r}, v{S0+r}, v{O0+r}")
    if gemm:
        for r in range(16): a(f"v_add_f32 v{S1+r}, v{S1+r}, v{G0+r}")
    a(f"v_mul_f32 v{T0+6}, 0, v{S0}")
    for r in range(1, 8): a(f"v_fma_f32 v{T0+6}, v{S0+r}, 0, v{T0+6}")
    a(f"v_cmp_u_f32 vcc, v{T0+6}, v{T0+6}")
    a(f"s_mov_b32 s{sT+2}, 0x5f800000")
    a(f"v_cmp_nle_f32 s[{sT+4}:{sT+5}], v{S0+8}, s{sT+2}")
    a("s_nop 1")
    a(f"s_or_b64 vcc, vcc, s[{sT+4}:{sT+5}]")
    a(f"s_cbranch_vccz {L}_ok")
    fallback(a, L)
    a.label(f"{L}_ok")
    a(f"v_rcp_f32 v{T0+6}, v{S0+8}")
    a("s_nop 0")
    for r in range(8): a(f"v_mul_f32 v{S0+r}, v{S0+r}, v{T0+6}")
    for q in range(4): a(f"v_cvt_pk_bf16_f32 v{P+q}, v{S0+2*q}, v{S0+2*q+1}")
    a(f"s_mul_i32 s{sT+1}, s{tb}, 88")
    a(f"s_lshl_b32 s{sT+2}, s{sJ}, 2")
    a(f"s_add_u32 s{sT+2}, s{sT+2}, s{sQP}")
    a(f"s_add_u32 s{sT+3}, s{sT+1}, s{sT+2}")
    a(f"s_lshl_b32 s{sT+3}, s{sT+3}, 10")
    a(f"s_add_u32 s{sT+3}, s{sT+3}, {WS_HO}")
    a(f"buffer_store_dwordx4 {vr(P,4)}, v{T0+1}, s[{sWS}:{sWS+3}], s{sT+3} offen")
    if gemm:
        a("s_waitcnt vmcnt(1)")
        a(f"v_lshlrev_b32 v{T0+3}, 16, v{T0+3}")
        for r in range(16): a(f"v_add_f32 v{S1+r}, v{S1+r}, v{T0+3}")
        for q in range(8):
            zr = T0 + 8 + q
            a(f"v_lshlrev_b32 v{T0+6}, 16, v{zr}")
            a(f"v_and_b32 v{T0+7}, 0xffff0000, v{zr}")
            a(f"v_mul_f32 v{S1+2*q}, v{S1+2*q}, v{T0+6}")
            a(f"v_mul_f32 v{S1+2*q+1}, v{S1+2*q+1}, v{T0+7}")
            a(f"v_cvt_pk_bf16_f32 v{W0+q}, v{S1+2*q}, v{S1+2*q+1}")
        a(f"s_lshl_b32 s{sT+2}, s{sT+2}, 1")
        a(f"s_add_u32 s{sT+3}, s{sT+1}, s{sT+2}")
        a(f"s_add_u32 s{sT+3}, s{sT+3}, 32")
        a(f"s_lshl_b32 s{sT+3}, s{sT+3}, 10")
        a(f"s_add_u32 s{sT+3}, s{sT+3}, {WS_HO}")
        a(f"buffer_store_dwordx4 {vr(W0,4)}, v{T0+1}, s[{sWS}:{sWS+3}], s{sT+3} offen")
        a(f"buffer_store_dwordx4 {vr(W1,4)}, v{T0+1}, s[{sWS}:{sWS+3}], s{sT+3} offen offset:1024")
    a("s_waitcnt vmcnt(0)")
    stamp(a, 3); stamp(a, 4)
    stamp_out(a)
    a("s_endpgm")

def fallback(a, L):
    Kt, St, NMt, Ot = W0, NM0, NM1, O0
    a.c("fallback: true max")
    a(f"v_add_u32 v{T0+16}, {WS_KF}, v{T0+1}")
    a(f"v_mov_b32 v{T0+17}, 0xff800000")
    a(f"s_mov_b32 s{sT+2}, 0")
    a.label(f"{L}_fb1")
    a(f"buffer_load_dwordx4 {vr(Kt,4)}, v{T0+16}, s[{sWS}:{sWS+3}], s{sT+2} offen")
    a("s_waitcnt vmcnt(0)")
    mfma(a, St, Kt, KF, None)
    a("s_nop 7"); a("s_nop 7")
    for k in range(0, 16, 2): a(f"v_max3_f32 v{T0+17}, v{T0+17}, v{St+k}, v{St+k+1}")
    a(f"s_add_u32 s{sT+2}, s{sT+2}, 1024")
    a(f"s_cmp_lt_u32 s{sT+2}, 65536")
    a(f"s_cbranch_scc1 {L}_fb1")
    a(f"v_mov_b32 v{T0+18}, v{T0+17}")
    a("s_nop 1")
    a(f"v_permlane32_swap_b32 v{T0+17}, v{T0+18}")
    a("s_nop 1")
    a(f"v_max_f32 v{T0+17}, v{T0+17}, v{T0+18}")
    for k in range(16):
        a(f"v_sub_f32 v{NMt+k}, 0, v{T0+17}")
        a(f"v_mov_b32 v{Ot+k}, 0")
    a(f"v_and_b32 v{T0+18}, 15, v0")
    a(f"v_lshlrev_b32 v{T0+18}, 4, v{T0+18}")
    a(f"v_bfe_u32 v{T0+19}, v0, 5, 1")
    a(f"v_lshlrev_b32 v{T0+19}, 8, v{T0+19}")
    a(f"v_add3_u32 v{T0+18}, v{T0+18}, v{T0+19}, 0")
    a(f"v_add_u32 v{T0+18}, {WS_VF}, v{T0+18}")
    a(f"s_mov_b32 s{sT+2}, 0")
    a.label(f"{L}_fb2")
    a(f"buffer_load_dwordx4 {vr(Kt,4)}, v{T0+16}, s[{sWS}:{sWS+3}], s{sT+2} offen")
    a(f"s_mov_b64 exec, s[{sM16}:{sM16+1}]")
    a(f"buffer_load_dwordx4 {vr(V0,4)}, v{T0+18}, s[{sWS}:{sWS+3}], s{sT+2} offen")
    a(f"buffer_load_dwordx4 {vr(V1,4)}, v{T0+18}, s[{sWS}:{sWS+3}], s{sT+2} offen offset:512")
    a("s_mov_b64 exec, -1")
    a("s_waitcnt vmcnt(0)")
    mfma(a, St, Kt, KF, NMt)
    a("s_nop 7"); a("s_nop 7")
    for k in range(16): a(f"v_exp_f32 v{St+k}, v{St+k}")
    a("s_nop 0")
    for i in range(8): a(f"v_cvt_pk_bf16_f32 v{P+i}, v{St+2*i}, v{St+2*i+1}")
    a("s_nop 1")
    mfma(a, Ot, V0, P, Ot)
    mfma(a, Ot, V1, P + 4, Ot)
    a(f"s_add_u32 s{sT+2}, s{sT+2}, 1024")
    a(f"s_cmp_lt_u32 s{sT+2}, 65536")
    a(f"s_cbranch_scc1 {L}_fb2")
    a("s_nop 7"); a("s_nop 7")
    for r in range(9): a(f"v_mov_b32 v{S0+r}, v{Ot+r}")

def wave_ids(a):
    a(f"v_readfirstlane_b32 s{sW}, v0")
    a("s_nop 3")
    a(f"s_lshr_b32 s{sW}, s{sW}, 6")
    a(f"s_and_b32 s{sI}, s2, 7")
    a(f"s_lshl_b32 s{sI}, s{sI}, 2")
    a(f"s_bfe_u32 s{sT}, s2, 0x20003")
    a(f"s_add_u32 s{sI}, s{sI}, s{sT}")
    a(f"s_lshr_b32 s{sJ}, s2, 5")

def gen_k2(name):
    a = Asm()
    a(f".globl {name}\n.p2align 8\n.type {name},@function")
    a.label(name)
    a("s_cmp_ge_u32 s2, 256")
    a(f"s_cbranch_scc1 {name}_exit")
    stamp(a, 0)
    if STAMP: a(f"s_memrealtime s[{sST+12}:{sST+13}]")
    a(f"s_load_dwordx2 s[{sWSP}:{sWSP+1}], s[0:1], 56")
    a(f"s_load_dwordx2 s[{sBSP}:{sBSP+1}], s[0:1], 64")
    a(f"s_load_dwordx2 s[{sWS}:{sWS+1}], s[0:1], 96")
    wave_ids(a)
    a(f"s_lshr_b32 s{sKP}, s{sW}, 2")
    a(f"s_and_b32 s{sQP}, s{sW}, 3")
    a(f"s_mov_b32 s{sM16}, 0x0000ffff")
    a(f"s_mov_b32 s{sM16+1}, 0x0000ffff")
    l, h, n, t = T0, T0 + 1, T0 + 2, T0 + 3
    a(f"v_and_b32 v{l}, 63, v0")
    a(f"v_lshrrev_b32 v{h}, 5, v{l}")
    a(f"v_and_b32 v{n}, 31, v0")
    a(f"v_lshrrev_b32 v{t}, 3, v{l}")
    a(f"s_lshl_b32 s{sT}, s{sI}, 6")
    a(f"s_lshl_b32 s{sT+1}, s{sW}, 3")
    a(f"s_add_u32 s{sT}, s{sT}, s{sT+1}")
    a(f"v_add_u32 v{t}, s{sT}, v{t}")
    a(f"v_lshlrev_b32 v{vWsrc}, 12, v{t}")
    a(f"s_and_b32 s{sT}, s{sW}, 1")
    a(f"s_lshl_b32 s{sT}, s{sT}, 2")
    a(f"v_lshrrev_b32 v{t}, 4, v{l}")
    a(f"v_add_u32 v{t}, s{sT}, v{t}")
    a(f"v_xor_b32 v{t}, v{t}, v{l}")
    a(f"v_and_b32 v{t}, 7, v{t}")
    a(f"v_lshlrev_b32 v{t}, 4, v{t}")
    a(f"v_add_u32 v{vWsrc}, v{vWsrc}, v{t}")
    a(f"v_and_b32 v{t}, 15, v{l}")
    a(f"v_lshlrev_b32 v{t}, 4, v{t}")
    a(f"s_and_b32 s{sT}, s{sW}, 1")
    a(f"s_lshl_b32 s{sT}, s{sT}, 8")
    a(f"v_add_u32 v{t}, s{sT}, v{t}")
    a(f"s_lshr_b32 s{sT+1}, s{sW}, 1")
    a(f"s_cmp_lt_u32 s{sT+1}, 2")
    a(f"s_cselect_b32 s{sT+2}, 9, 10")
    a(f"v_lshlrev_b32 v{vKVsrc}, s{sT+2}, v{h}")
    a(f"v_add_u32 v{vKVsrc}, v{vKVsrc}, v{t}")
    a(f"s_lshl_b32 s{sT+2}, s{sT+1}, 10")
    a(f"s_add_u32 s{sT+2}, s{sT+2}, {WS_KF}")
    a(f"s_mov_b32 s{sT+3}, {WS_VF}")
    a(f"s_cmp_eq_u32 s{sT+1}, 2")
    a(f"s_cselect_b32 s{sT+2}, s{sT+3}, s{sT+2}")
    a(f"s_mov_b32 s{sT+3}, {WS_VF - 2048 + 512}")
    a(f"s_cmp_eq_u32 s{sT+1}, 3")
    a(f"s_cselect_b32 s{sT+2}, s{sT+3}, s{sT+2}")
    a(f"v_add_u32 v{vKVsrc}, s{sT+2}, v{vKVsrc}")
    a(f"s_mov_b32 s{sKVoff}, 0")
    a(f"s_mov_b32 s{sWoff}, 0")
    a(f"s_mov_b32 s{sZoff}, 0")
    a(f"s_lshl_b32 s{sMW}, s{sW}, 10")
    a(f"s_lshl_b32 s{sMKV}, s{sT+1}, 10")
    a(f"s_add_u32 s{sMKV}, s{sMKV}, s{sT}")
    a(f"s_add_u32 s{sMKV}, s{sMKV}, 8192")
    a(f"s_lshl_b32 s{sT}, s{sJ}, 2")
    a(f"s_add_u32 s{sT}, s{sT}, s{sQP}")
    a(f"s_lshl_b32 s{sT}, s{sT}, 7")
    a(f"s_lshl_b32 s{sT+1}, s{sKP}, 1")
    a(f"s_add_u32 s{sT}, s{sT}, s{sT+1}")
    a(f"s_lshl_b32 s{sT}, s{sT}, 10")
    a(f"s_add_u32 s{sT}, s{sT}, {WS_Z2}")
    a(f"v_lshlrev_b32 v{t}, 4, v{l}")
    a(f"v_add_u32 v{vZsrc}, s{sT}, v{t}")
    a(f"s_lshl_b32 s{sT}, s{sKP}, 10")
    a(f"s_add_u32 s{sT}, s{sT}, 8192")
    a(f"v_add_u32 v{vKrd}, s{sT}, v{t}")
    a(f"v_and_b32 v{t}, 15, v{l}")
    a(f"v_lshlrev_b32 v{t}, 4, v{t}")
    a(f"v_lshlrev_b32 v{vVrd}, 8, v{h}")
    a(f"v_add_u32 v{vVrd}, v{vVrd}, v{t}")
    a(f"s_lshl_b32 s{sT}, s{sKP}, 9")
    a(f"s_add_u32 s{sT}, s{sT}, 10240")
    a(f"v_add_u32 v{vVrd}, s{sT}, v{vVrd}")
    a(f"v_lshrrev_b32 v{t}, 1, v{n}")
    a(f"s_lshl_b32 s{sT}, s{sKP}, 2")
    a(f"v_add_u32 v{vWA0}, s{sT}, v{h}")
    a(f"v_xor_b32 v{vWA0}, v{vWA0}, v{t}")
    a(f"v_and_b32 v{vWA0}, 7, v{vWA0}")
    a(f"v_xor_b32 v{vWA1}, 2, v{vWA0}")
    a(f"v_lshlrev_b32 v{vWA0}, 4, v{vWA0}")
    a(f"v_lshlrev_b32 v{vWA1}, 4, v{vWA1}")
    a(f"v_lshlrev_b32 v{t}, 7, v{n}")
    a(f"v_add_u32 v{vWA0}, v{vWA0}, v{t}")
    a(f"v_add_u32 v{vWA1}, v{vWA1}, v{t}")
    a(f"s_lshl_b32 s{sT}, s{sI}, 6")
    a(f"s_lshl_b32 s{sT+1}, s{sJ}, 2")
    a(f"s_add_u32 s{sT}, s{sT}, s{sT+1}")
    a(f"s_add_u32 s{sT}, s{sT}, s{sQP}")
    a(f"s_lshl_b32 s{sT}, s{sT}, 10")
    a(f"s_add_u32 s{sT+1}, s{sT}, {32*1024}")
    a(f"v_lshlrev_b32 v{t}, 4, v{l}")
    a("s_waitcnt lgkmcnt(0)")
    a(f"s_mov_b32 s{sWS+2}, {WS_END + (65536 if STAMP else 0)}")
    a(f"s_mov_b32 s{sWS+3}, 0x00020000")
    a(f"s_mov_b32 s{sWSP+2}, {2048*2048*2}")
    a(f"s_mov_b32 s{sWSP+3}, 0x00020000")
    a(f"s_mov_b32 s{sBSP+2}, 4096")
    a(f"s_mov_b32 s{sBSP+3}, 0x00020000")
    a.vmem(f"buffer_load_dwordx4 {vr(Q0,4)}, v{t}, s[{sWS}:{sWS+3}], s{sT} offen", ('Q',))
    a.vmem(f"buffer_load_dwordx4 {vr(Q1,4)}, v{t}, s[{sWS}:{sWS+3}], s{sT+1} offen", ('Q',))
    a(f"s_cmp_eq_u32 s{sJ}, 7")
    a(f"s_cbranch_scc1 {name}_ng")
    vm0, lg0 = a.vm.copy(), a.lg.copy()
    body(a, True, name + "_g")
    finish(a, True, name + "_g")
    a.label(f"{name}_ng")
    a.vm, a.lg = vm0, lg0
    body(a, False, name + "_n")
    finish(a, False, name + "_n")
    a.label(f"{name}_exit")
    a("s_endpgm")
    return a.text()

def kd(name, vgpr=256):
    return f""".p2align 6
.amdhsa_kernel {name}
  .amdhsa_next_free_vgpr {vgpr}
  .amdhsa_next_free_sgpr 102
  .amdhsa_accum_offset {vgpr}
  .amdhsa_group_segment_fixed_size 0
  .amdhsa_kernarg_size 104
  .amdhsa_user_sgpr_count 2
  .amdhsa_user_sgpr_kernarg_segment_ptr 1
  .amdhsa_system_sgpr_workgroup_id_x 1
  .amdhsa_float_denorm_mode_32 3
.end_amdhsa_kernel
"""
```

```python
from asm import *
from layout import *
vL, vH, vN = 1, 2, 3
vWsrc, vRd, vHO = 4, 5, 6
vT = 8
WB = 24
ACC = 40
HO = 72
sX, sWO, sWOUT, sWS, sOUT = 4, 8, 12, 16, 20
sI, sJ, sW, sNB, sKQ = 26, 27, 28, 29, 30
sT = 32
def mfma(a, D, A, B, C):
    c = "0" if C is None else vr(C, 16)
    a(f"v_mfma_f32_32x32x16_bf16 {vr(D,16)}, {vr(A,4)}, {vr(B,4)}, {c}")
NSLOT = 16
DEBUG = False
def w_dma(a, kq, ks):
    g = 22 * kq + ks
    srd, row = (sWO, 16 * g) if g < 32 else (sWOUT, 16 * (g - 32))
    a(f"s_add_u32 m0, s{sT+8}, {kq * NSLOT * 2048 + (ks % NSLOT) * 2048}")
    a(f"s_mov_b32 s{sT}, {row * 1024}")
    a.vmem(f"buffer_load_dwordx4 v{vWsrc}, s[{srd}:{srd+3}], s{sT} offen lds", ('W', ks))
def w_reads(a, ks, buf):
    for cb in range(2):
        for sec in range(2):
            a.ds(f"ds_read_b64_tr_b16 {vr(buf + 4*cb + 2*sec, 2)}, v{vRd} offset:{(ks % NSLOT) * 2048 + cb * 256 + sec * 1024}", ('R', ks))
def compute(a, k0, k1):
    for ks in range(k0, k1):
        if ks == k0: w_reads(a, ks, WB + 8 * (ks % 2))
        if ks + 1 < k1: w_reads(a, ks + 1, WB + 8 * ((ks + 1) % 2))
        a.wait(vm=('H', ks), lg=('R', ks))
        b = WB + 8 * (ks % 2)
        mfma(a, ACC, b, HO + 4 * ks, None if ks == 0 else ACC)
        mfma(a, ACC + 16, b + 4, HO + 4 * ks, None if ks == 0 else ACC + 16)
def gen_k3(name):
    a = Asm()
    a(f".globl {name}\n.p2align 8\n.type {name},@function")
    a.label(name)
    a("s_cmp_ge_u32 s2, 256")
    a(f"s_cbranch_scc1 {name}_exit")
    a(f"s_load_dwordx2 s[{sX}:{sX+1}], s[0:1], 0")
    a(f"s_load_dwordx2 s[{sWO}:{sWO+1}], s[0:1], 32")
    a(f"s_load_dwordx2 s[{sWOUT}:{sWOUT+1}], s[0:1], 72")
    a(f"s_load_dwordx2 s[{sOUT}:{sOUT+1}], s[0:1], 80")
    a(f"s_load_dwordx2 s[{sWS}:{sWS+1}], s[0:1], 96")
    a(f"v_readfirstlane_b32 s{sW}, v0")
    a(f"v_and_b32 v{vL}, 63, v0")
    a(f"v_lshrrev_b32 v{vH}, 5, v{vL}")
    a(f"v_and_b32 v{vN}, 31, v0")
    a(f"s_lshr_b32 s{sW}, s{sW}, 6")
    a(f"s_and_b32 s{sI}, s2, 7")
    a(f"s_lshl_b32 s{sI}, s{sI}, 2")
    a(f"s_bfe_u32 s{sT}, s2, 0x20003")
    a(f"s_add_u32 s{sI}, s{sI}, s{sT}")
    a(f"s_lshr_b32 s{sJ}, s2, 5")
    a(f"s_lshr_b32 s{sNB}, s{sW}, 2")
    a(f"s_and_b32 s{sKQ}, s{sW}, 3")
    t = vT
    r, c16, un = t, t + 1, t + 2
    a(f"v_bfe_u32 v{r}, v{vL}, 2, 2")
    a(f"v_and_b32 v{c16}, 3, v{vL}")
    a(f"v_lshrrev_b32 v{un}, 4, v{vL}")
    a(f"v_lshrrev_b32 v{t+3}, 1, v{un}")
    a(f"v_lshl_add_u32 v{t+3}, v{t+3}, 2, v{r}")
    a(f"s_lshl_b32 s{sT}, s{sNB}, 3")
    a(f"v_add_u32 v{t+3}, s{sT}, v{t+3}")
    a(f"v_lshlrev_b32 v{vWsrc}, 10, v{t+3}")
    a(f"v_and_b32 v{t+3}, 1, v{un}")
    a(f"v_lshl_add_u32 v{vWsrc}, v{t+3}, 6, v{vWsrc}")
    a(f"v_lshl_add_u32 v{vWsrc}, v{c16}, 4, v{vWsrc}")
    a(f"s_lshl_b32 s{sT}, s{sJ}, 7")
    a(f"v_add_u32 v{vWsrc}, s{sT}, v{vWsrc}")
    a(f"v_lshlrev_b32 v{vRd}, 9, v{vH}")
    a(f"v_lshl_add_u32 v{vRd}, v{r}, 6, v{vRd}")
    a(f"v_lshl_add_u32 v{vRd}, v{t+3}, 5, v{vRd}")
    a(f"v_lshl_add_u32 v{vRd}, v{c16}, 3, v{vRd}")
    a(f"s_lshl_b32 s{sT}, s{sKQ}, 15")
    a(f"v_add_u32 v{vRd}, s{sT}, v{vRd}")
    a(f"s_lshl_b32 s{sT}, s{sI}, 1")
    a(f"s_add_u32 s{sT}, s{sT}, s{sNB}")
    a(f"s_mul_i32 s{sT+9}, s{sT}, 88")
    a(f"s_mul_i32 s{sT+1}, s{sKQ}, 22")
    a(f"s_add_u32 s{sT+9}, s{sT+9}, s{sT+1}")
    a(f"s_lshl_b32 s{sT+9}, s{sT+9}, 10")
    a(f"s_add_u32 s{sT+9}, s{sT+9}, {WS_HO}")
    a(f"v_lshlrev_b32 v{vHO}, 4, v{vL}")
    a(f"s_lshl_b32 s{sT+8}, s{sNB}, 10")
    a("s_waitcnt lgkmcnt(0)")
    for (s, size) in ((sX, 2048*512*2), (sWO, 512*512*2), (sWOUT, 896*512*2), (sWS, WS_END + (0x1000000 if DEBUG else 0)), (sOUT, 2048*512*2)):
        a(f"s_mov_b32 s{s+2}, {size}")
        a(f"s_mov_b32 s{s+3}, 0x00020000")
    def h_load(ks):
        a(f"s_add_u32 s{sT+1}, s{sT+9}, {(ks // 4) * 4096}")
        a.vmem(f"buffer_load_dwordx4 {vr(HO+4*ks,4)}, v{vHO}, s[{sWS}:{sWS+3}], s{sT+1} offen offset:{(ks % 4) * 1024}", ('H', ks))
    for kq in range(4):
        if kq < 3:
            a(f"s_cmp_eq_u32 s{sKQ}, {kq}")
            a(f"s_cbranch_scc0 {name}_q{kq+1}")
        vm0, lg0 = a.vm.copy(), a.lg.copy()
        for ks in range(NSLOT):
            w_dma(a, kq, ks)
            h_load(ks)
        for ks in range(NSLOT, 22): h_load(ks)
        a.wait(vm=('W', NSLOT - 1))
        a("s_barrier")
        compute(a, 0, 6)
        a.wait_all(vm=False, lg=True)
        a("s_barrier")
        for ks in range(NSLOT, 22): w_dma(a, kq, ks)
        compute(a, 6, 16)
        a.wait(vm=('W', 21))
        a("s_barrier")
        compute(a, 16, 22)
        if kq < 3:
            a(f"s_branch {name}_red")
            a.label(f"{name}_q{kq+1}")
            a.vm, a.lg = vm0, lg0
    a.label(f"{name}_red")
    a.vm.items = []; a.lg.items = []
    a(f"s_lshl_b32 s{sT}, s{sI}, 6")
    a(f"s_lshl_b32 s{sT+1}, s{sNB}, 5")
    a(f"s_add_u32 s{sT}, s{sT}, s{sT+1}")
    a(f"v_add_u32 v{t}, s{sT}, v{vN}")
    a(f"v_lshlrev_b32 v{t}, 10, v{t}")
    a(f"v_lshl_add_u32 v{t}, v{vH}, 3, v{t}")
    a(f"s_lshl_b32 s{sT}, s{sJ}, 7")
    a(f"s_lshl_b32 s{sT+1}, s{sKQ}, 5")
    a(f"s_add_u32 s{sT}, s{sT}, s{sT+1}")
    a(f"v_add_u32 v{t}, s{sT}, v{t}")
    a(f"buffer_load_dwordx2 {vr(t+2,2)}, v{t}, s[{sX}:{sX+3}], 0 offen")
    a(f"buffer_load_dwordx2 {vr(t+4,2)}, v{t}, s[{sX}:{sX+3}], 0 offen offset:16")
    a("s_nop 7"); a("s_nop 7")
    if DEBUG:
        a(f"s_lshl_b32 s{sT+2}, s2, 3")
        a(f"s_add_u32 s{sT+2}, s{sT+2}, s{sW}")
        a(f"s_lshl_b32 s{sT+2}, s{sT+2}, 13")
        a(f"s_add_u32 s{sT+2}, s{sT+2}, {WS_END}")
        a(f"v_lshlrev_b32 v{t+6}, 2, v{vL}")
        for r_ in range(32):
            a(f"s_add_u32 s{sT+3}, s{sT+2}, {r_*256}")
            a(f"buffer_store_dword v{ACC+r_}, v{t+6}, s[{sWS}:{sWS+3}], s{sT+3} offen")
    a("s_barrier")
    a(f"v_lshlrev_b32 v{t+6}, 4, v{vL}")
    a(f"s_lshl_b32 s{sT}, s{sNB}, 15")
    a(f"s_lshl_b32 s{sT+1}, s{sKQ}, 11")
    a(f"s_add_u32 s{sT+1}, s{sT+1}, s{sT}")
    a(f"v_add_u32 v{t+7}, s{sT+1}, v{t+6}")
    for p in range(4):
        a(f"ds_write_b128 v{t+7}, {vr(ACC+8*p,4)} offset:{p*8192}")
        a(f"ds_write_b128 v{t+7}, {vr(ACC+8*p+4,4)} offset:{p*8192+1024}")
    a(f"s_lshl_b32 s{sT+1}, s{sKQ}, 13")
    a(f"s_add_u32 s{sT+1}, s{sT+1}, s{sT}")
    a(f"v_add_u32 v{t+7}, s{sT+1}, v{t+6}")
    a("s_waitcnt lgkmcnt(0)")
    a("s_barrier")
    for s_ in range(4):
        a(f"ds_read_b128 {vr(HO+8*s_,4)}, v{t+7} offset:{s_*2048}")
        a(f"ds_read_b128 {vr(HO+8*s_+4,4)}, v{t+7} offset:{s_*2048+1024}")
    a("s_waitcnt lgkmcnt(0)")
    for r_ in range(8):
        a(f"v_add_f32 v{HO+r_}, v{HO+r_}, v{HO+8+r_}")
        a(f"v_add_f32 v{HO+16+r_}, v{HO+16+r_}, v{HO+24+r_}")
    for r_ in range(8): a(f"v_add_f32 v{HO+r_}, v{HO+r_}, v{HO+16+r_}")
    a("s_waitcnt vmcnt(0)")
    for q in range(4):
        xr = t + 2 + q
        a(f"v_lshlrev_b32 v{t+8}, 16, v{xr}")
        a(f"v_and_b32 v{t+9}, 0xffff0000, v{xr}")
        a(f"v_add_f32 v{HO+2*q}, v{HO+2*q}, v{t+8}")
        a(f"v_add_f32 v{HO+2*q+1}, v{HO+2*q+1}, v{t+9}")
        a(f"v_cvt_pk_bf16_f32 v{HO+16+q}, v{HO+2*q}, v{HO+2*q+1}")
    a(f"buffer_store_dwordx2 {vr(HO+16,2)}, v{t}, s[{sOUT}:{sOUT+3}], 0 offen")
    a(f"buffer_store_dwordx2 {vr(HO+18,2)}, v{t}, s[{sOUT}:{sOUT+3}], 0 offen offset:16")
    a("s_waitcnt vmcnt(0)")
    a.label(f"{name}_exit")
    a("s_endpgm")
    return a.text()
```

```python
import sys
import k1, k2, k3
from k2 import kd
NAME = "parallel_sum__grouped_kv_mqa__mixer_gmlp__prompt"
hdr = open('cdna_kernels/%s.s.ref' % NAME).read().split("; Override launch geometry")[0]
def build3(extra_empty=0):
    s = hdr
    s += "; @launch kernel=proj_kernel grid=(256,1,1) block=(512,1,1) lds=163840\n"
    s += "; @launch kernel=mix_kernel grid=(256,1,1) block=(512,1,1) lds=98304\n"
    s += "; @launch kernel=outp_kernel grid=(256,1,1) block=(512,1,1) lds=131072\n"
    for k in range(extra_empty): s += "; @launch kernel=empty_kernel grid=(256,1,1) block=(512,1,1) lds=0\n"
    s += '.amdgcn_target "amdgcn-amd-amdhsa--gfx950"\n.text\n'
    s += k1.gen_k1('proj_kernel') + k2.gen_k2('mix_kernel') + k3.gen_k3('outp_kernel')
    names = ['proj_kernel', 'mix_kernel', 'outp_kernel']
    if extra_empty:
        s += ".globl empty_kernel\n.p2align 8\n.type empty_kernel,@function\nempty_kernel:\n    s_endpgm\n"
        names.append('empty_kernel')
    s += '.section .rodata,"a"\n' + "".join(kd(n) for n in names)
    return s
if __name__ == "__main__":
    out = sys.argv[1] if len(sys.argv) > 1 else 'cdna_kernels/%s.s' % NAME
    extra = int(sys.argv[2]) if len(sys.argv) > 2 else 0
    if len(sys.argv) > 3: k3.DEBUG = True
    open(out, 'w').write(build3(extra))
```

```python
class Q:
    def __init__(self, name, maxv):
        self.name, self.maxv = name, maxv
        self.items = []
    def issue(self, tag):
        self.items.append(tag)
    def need(self, tag):
        idx = [i for i, t in enumerate(self.items) if t == tag]
        if not idx: return None
        n = len(self.items) - 1 - idx[-1]
        return n
    def waited(self, n):
        if n < len(self.items):
            self.items = self.items[len(self.items) - n:] if n > 0 else []
    def copy(self):
        q = Q(self.name, self.maxv); q.items = list(self.items); return q

class Asm:
    def __init__(self):
        self.lines = []
        self.vm = Q('vmcnt', 63)
        self.lg = Q('lgkmcnt', 15)
        self.mute = False
    def __call__(self, s=""):
        if not self.mute:
            for l in s.split("\n"):
                self.lines.append(l if (l.endswith(":") or l.startswith(".")) else "    " + l.strip())
    def label(self, s):
        if not self.mute: self.lines.append(s + ":")
    def c(self, s):
        if not self.mute: self.lines.append("    ; " + s)
    def vmem(self, s, tag):
        self(s); self.vm.issue(tag)
    def ds(self, s, tag):
        self(s); self.lg.issue(tag)
    def wait(self, vm=None, lg=None):
        parts = []
        def res(q, tags):
            if tags is None: return None
            if not isinstance(tags, list): tags = [tags]
            ns = [q.need(t) for t in tags]
            ns = [n for n in ns if n is not None]
            if not ns: return None
            n = min(ns)
            n = min(n, q.maxv)
            q.waited(n)
            return n
        a = res(self.vm, vm); b = res(self.lg, lg)
        if a is not None: parts.append("vmcnt(%d)" % a)
        if b is not None: parts.append("lgkmcnt(%d)" % b)
        if parts: self("s_waitcnt " + " ".join(parts))
    def wait_all(self, vm=True, lg=True):
        parts = []
        if vm: parts.append("vmcnt(0)"); self.vm.waited(0)
        if lg: parts.append("lgkmcnt(0)"); self.lg.waited(0)
        self("s_waitcnt " + " ".join(parts))
    def text(self):
        return "\n".join(self.lines) + "\n"

def vr(base, n=1):
    return "v%d" % base if n == 1 else "v[%d:%d]" % (base, base + n - 1)
def sr(base, n=1):
    return "s%d" % base if n == 1 else "s[%d:%d]" % (base, base + n - 1)

class Stamps:
    on = False
    base = 72
    region = 0
def rstamp(a, k):
    if Stamps.on: a(f"s_memrealtime s[{Stamps.base+2*k}:{Stamps.base+2*k+1}]")
def rstamp_out(a, kidx, n, sWS, sW, vtmp, stmp, ws_end):
    if not Stamps.on: return
    a("s_waitcnt lgkmcnt(0)")
    a(f"s_add_u32 s{stmp}, s2, {kidx*256}")
    a(f"s_lshl_b32 s{stmp}, s{stmp}, 3")
    a(f"s_add_u32 s{stmp}, s{stmp}, s{sW}")
    a(f"s_lshl_b32 s{stmp}, s{stmp}, 6")
    a(f"s_add_u32 s{stmp}, s{stmp}, {ws_end}")
    a(f"v_mov_b32 v{vtmp}, 0")
    a("s_mov_b64 exec, 1")
    for k in range(n):
        a(f"v_mov_b32 v{vtmp+1}, s{Stamps.base+2*k}")
        a(f"buffer_store_dword v{vtmp+1}, v{vtmp}, s[{sWS}:{sWS+3}], s{stmp} offen offset:{4*k}")
        a("s_nop 1")
    a("s_waitcnt vmcnt(0)")
```

```python
from asm import *
from layout import *
import math, struct
def f2u(x): return struct.unpack('<I', struct.pack('<f', x))[0]
CFG = dict(pat=1, sc=1)
def SC(): return " sc1" if CFG['sc'] else ""

sWS, sX, sWQ, sWIN, sWSP, sBSP, sWO, sWOUT, sOUT = 4, 8, 12, 16, 20, 24, 28, 32, 36
sWK, sWV, sDBG = 40, 42, 44
sI, sJ, sW, sHI, sLO = 46, 47, 48, 49, 50
sM16 = 52
sC1, sQW, sKVW, sSoff, sZc, sQc, sLw = 54, 55, 56, 57, 58, 59, 60
sWoff, sKVoff, sZoff, sDma, sMW, sMKV, sTog, sCnt = 54, 55, 56, 57, 58, 59, 60, 61
sT = 62
vL, vH, vN = 1, 2, 3
vZsrc, vQsrc = 4, 5
vAz, vAz2, vAq, vAq2 = 6, 7, 8, 9
vX0 = 10
vT = 14
BUF0, BUF1 = 32, 48
ZV, A1, AQ = 64, 80, 96
XS = 64
vC0 = 112
Z1T = 120
XN = 128
Q0, Q1, KF, V0, V1, P = 4, 8, 12, 16, 20, 24
W0, W1 = 32, 36
vWsrc, vKVsrc, vZs2 = 40, 41, 42
vKrd, vVrd, vWA0, vWA1 = 43, 44, 45, 46
S0, S1, NM0, NM1, O0, O1, G0, G1 = 48, 64, 80, 96, 112, 128, 144, 160
Z = 176
T0 = 208
Z1P = 240
vB = 248
vW3 = 249
WB, ACC, HO = 24, 40, 72
vRd3, vHO = 5, 6
LDS_XN = 65536
LDS_S4 = 131072
LDS_MISC = 147456
LDS_STAT = LDS_MISC
LDS_MR = LDS_MISC + 2048
LDS_TRKV = LDS_MISC + 3072
LDS_Q = LDS_MISC + 8192
LDS_TR = 102400
SLOT = 12288
HALF = 4 * SLOT
LDS_WO = 98304
GELU_C0 = -2.0 * math.sqrt(2.0 / math.pi) * math.log2(math.e)
GELU_C1 = GELU_C0 * 0.044715
QSCALE = 0.25 * math.log2(math.e)
SPIN_MAX = 100000

def mfma(a, D, A, B, C):
    c = "0" if C is None else vr(C, 16)
    a(f"v_mfma_f32_32x32x16_bf16 {vr(D,16)}, {vr(A,4)}, {vr(B,4)}, {c}")
def srd(s): return f"s[{s}:{s+3}]"

def flag_set(a, word, vt):
    a(f"s_lshl_b32 s{sT}, s{sI}, 3")
    a(f"s_add_u32 s{sT}, s{sT}, s{sJ}")
    a(f"s_lshl_b32 s{sT}, s{sT}, 7")
    a(f"s_add_u32 s{sT}, s{sT}, {WS_FL + 4*word}")
    a(f"v_mov_b32 v{vt}, 0")
    a(f"v_mov_b32 v{vt+1}, 1")
    a("s_mov_b64 exec, 1")
    a(f"buffer_store_dword v{vt+1}, v{vt}, {srd(sWS)}, s{sT} offen sc1")
    a("s_mov_b64 exec, -1")

def poll(a, L, vaddr, vt, nlanes):
    a(f"s_mov_b32 s{sT+1}, 0")
    a(f"v_cmp_gt_u32 s[{sT+2}:{sT+3}], {nlanes}, v{vL}" if nlanes <= 64 and nlanes != 64 else f"s_mov_b64 s[{sT+2}:{sT+3}], -1")
    a.label(f"{L}_poll")
    a(f"buffer_load_dword v{vt}, v{vaddr}, {srd(sWS)}, 0 offen sc1")
    a("s_waitcnt vmcnt(0)")
    a(f"v_cmp_ne_u32 vcc, 0, v{vt}")
    a("s_nop 1")
    a(f"s_and_b64 vcc, vcc, s[{sT+2}:{sT+3}]")
    a(f"s_cmp_eq_u64 vcc, s[{sT+2}:{sT+3}]")
    a(f"s_cbranch_scc1 {L}_done")
    a(f"s_add_u32 s{sT+1}, s{sT+1}, 1")
    a(f"s_cmp_lt_u32 s{sT+1}, {SPIN_MAX}")
    a(f"s_cbranch_scc1 {L}_poll")
    a.label(f"{L}_done")

def wait_cleared(a, L, vt):
    a(f"s_mov_b32 s{sT+1}, 0")
    a(f"v_and_b32 v{vt}, 1, v{vL}")
    a(f"v_lshlrev_b32 v{vt}, 7, v{vt}")
    a.label(f"{L}_cl")
    a(f"global_load_dword v{vt+1}, v{vt}, s[{sDBG}:{sDBG+1}] sc1")
    a("s_waitcnt vmcnt(0)")
    a(f"v_cmp_le_u32 vcc, 128, v{vt+1}")
    a("s_nop 1")
    a("s_cmp_eq_u64 vcc, exec")
    a(f"s_cbranch_scc1 {L}_cld")
    a(f"s_add_u32 s{sT+1}, s{sT+1}, 1")
    a(f"s_cmp_lt_u32 s{sT+1}, {SPIN_MAX}")
    a(f"s_cbranch_scc1 {L}_cl")
    a.label(f"{L}_cld")

def clear_flags(a, L):
    a(f"s_cmp_eq_u32 s{sW}, 7")
    a(f"s_cbranch_scc0 {L}_noclr")
    a(f"s_lshl_b32 s{sT}, s{sI}, 3")
    a(f"s_add_u32 s{sT}, s{sT}, s{sJ}")
    a(f"s_lshl_b32 s{sT}, s{sT}, 7")
    a(f"s_add_u32 s{sT}, s{sT}, {WS_FL}")
    c = vT + 12
    for k in range(5): a(f"v_mov_b32 v{c+k}, 0")
    a("s_mov_b64 exec, 1")
    a(f"buffer_store_dwordx4 v[{c}:{c+3}], v{c+4}, {srd(sWS)}, s{sT} offen sc1")
    a("s_waitcnt vmcnt(0)")
    a(f"s_and_b32 s{sT}, s2, 1")
    a(f"s_lshl_b32 s{sT}, s{sT}, 7")
    a(f"v_mov_b32 v{c}, s{sT}")
    a(f"v_mov_b32 v{c+1}, 1")
    a(f"global_atomic_add v{c}, v{c+1}, s[{sDBG}:{sDBG+1}] sc1")
    a("s_mov_b64 exec, -1")
    a.label(f"{L}_noclr")

def slot_addr(slot): return LDS_S4 if slot == 4 else slot * 16384

def gelu_ops(base, n, t):
    out = []
    for g in range(0, n, 4):
        R = [base + g + k for k in range(4)]; T = [t + k for k in range(4)]
        out += [f"v_mul_f32 v{x}, v{r}, v{r}" for r, x in zip(R, T)]
        out += [f"v_fma_f32 v{x}, v{x}, s{sC1}, v{vC0}" for r, x in zip(R, T)]
        out += [f"v_mul_f32 v{x}, v{x}, v{r}" for r, x in zip(R, T)]
        out += [f"v_exp_f32 v{x}, v{x}" for r, x in zip(R, T)]
        out += [f"v_add_f32 v{x}, 1.0, v{x}" for r, x in zip(R, T)]
        out += [f"v_rcp_f32 v{x}, v{x}" for r, x in zip(R, T)]
        out += [f"v_mul_f32 v{r}, v{r}, v{x}" for r, x in zip(R[:1], T[:1])]
        out += [f"v_mul_f32 v{r}, v{r}, v{x}" for r, x in zip(R[1:3], T[1:3])]
        out += [f"v_mul_f32 v{r}, v{r}, v{x}" for r, x in zip(R[3:], T[3:])]
    return out

def ln1_load(a):
    t = vT; c, r = t, t + 1
    a(f"v_and_b32 v{c}, 7, v{vL}")
    a(f"v_lshrrev_b32 v{r}, 3, v{vL}")
    a(f"s_lshl_b32 s{sT}, s{sI}, 6")
    a(f"s_lshl_b32 s{sT+1}, s{sW}, 3")
    a(f"s_add_u32 s{sT}, s{sT}, s{sT+1}")
    a(f"v_add_u32 v{t+2}, s{sT}, v{r}")
    a(f"v_lshlrev_b32 v{t+2}, 10, v{t+2}")
    a(f"v_lshl_add_u32 v{t+2}, v{c}, 4, v{t+2}")
    for u in range(8):
        a.vmem(f"buffer_load_dwordx4 {vr(XS+4*u,4)}, v{t+2}, {srd(sX)}, 0 offen offset:{u*128}", 'x')

def ln1_compute(a):
    t = vT; c, r = t, t + 1
    s, q, ones = t + 3, t + 4, t + 5
    a(f"v_mov_b32 v{ones}, 0x3f803f80")
    for x in (s, q, t + 6, t + 7): a(f"v_mov_b32 v{x}, 0")
    a.wait(vm='x')
    for k in range(0, 32, 2):
        a(f"v_dot2_f32_bf16 v{s}, v{XS+k}, v{ones}, v{s}")
        a(f"v_dot2_f32_bf16 v{q}, v{XS+k}, v{XS+k}, v{q}")
        a(f"v_dot2_f32_bf16 v{t+6}, v{XS+k+1}, v{ones}, v{t+6}")
        a(f"v_dot2_f32_bf16 v{t+7}, v{XS+k+1}, v{XS+k+1}, v{t+7}")
    a("s_nop 1")
    a(f"v_add_f32 v{s}, v{s}, v{t+6}")
    a(f"v_add_f32 v{q}, v{q}, v{t+7}")
    for pat in ("quad_perm:[1,0,3,2]", "quad_perm:[2,3,0,1]", "row_half_mirror"):
        a("s_nop 1")
        a(f"v_add_f32_dpp v{s}, v{s}, v{s} {pat} row_mask:0xf bank_mask:0xf")
        a(f"v_add_f32_dpp v{q}, v{q}, v{q} {pat} row_mask:0xf bank_mask:0xf")
    a("s_nop 0")
    a(f"v_mul_f32 v{s}, {f2u(1/512)}, v{s}")
    a(f"v_mul_f32 v{q}, {f2u(1/512)}, v{q}")
    a(f"v_fma_f32 v{q}, -v{s}, v{s}, v{q}")
    a(f"v_max_f32 v{q}, 0, v{q}")
    a(f"v_add_f32 v{q}, {f2u(1e-5)}, v{q}")
    a(f"v_rsq_f32 v{q}, v{q}")
    a("s_nop 0")
    a(f"v_mul_f32 v{s}, v{s}, v{q}")
    a(f"v_sub_f32 v{s}, 0, v{s}")
    a(f"s_and_b32 s{sT}, s{sW}, 3")
    a(f"s_lshl_b32 s{sT}, s{sT}, 3")
    a(f"v_add_u32 v{t+8}, s{sT}, v{r}")
    a(f"v_xor_b32 v{t+8}, v{t+8}, v{c}")
    a(f"v_lshlrev_b32 v{t+8}, 4, v{t+8}")
    a(f"v_lshrrev_b32 v{t+9}, 1, v{c}")
    a(f"v_lshl_add_u32 v{t+8}, v{t+9}, 10, v{t+8}")
    a(f"v_and_b32 v{t+9}, 1, v{c}")
    a(f"v_lshl_add_u32 v{t+8}, v{t+9}, 9, v{t+8}")
    a(f"s_lshl_b32 s{sT}, s{sHI}, 15")
    a(f"s_add_u32 s{sT}, s{sT}, {LDS_XN}")
    a(f"v_add_u32 v{t+8}, s{sT}, v{t+8}")
    for u in range(8):
        for k in range(4):
            x = XS + 4 * u + k
            lo, hi = (t + 6, t + 7) if k % 2 == 0 else (t + 9, t + 10)
            a(f"v_lshlrev_b32 v{lo}, 16, v{x}")
            a(f"v_and_b32 v{hi}, 0xffff0000, v{x}")
            a(f"v_fma_f32 v{lo}, v{lo}, v{q}, v{s}")
            a(f"v_fma_f32 v{hi}, v{hi}, v{q}, v{s}")
            a(f"v_cvt_pk_bf16_f32 v{x}, v{lo}, v{hi}")
        a.ds(f"ds_write_b128 v{t+8}, {vr(XS+4*u,4)} offset:{u*4096}", 'xw')

def dma_ops(a, st):
    base = slot_addr(st['slot']); ty = st['type']; out = []
    for d in range(2):
        def f(d=d):
            if ty == 'z':
                a(f"s_add_u32 s{sSoff}, s{sZc}, {(st['k0'] + 4*d) * 3584 + st['colb']}")
                a(f"s_add_u32 m0, s{sLw}, {base + d*1024}")
                a("s_nop 0")
                a.vmem(f"buffer_load_dwordx4 v{vZsrc}, {srd(sWIN)}, s{sSoff} offen lds", ('D', st['n']))
            elif ty == 'q':
                a(f"s_add_u32 s{sSoff}, s{sQc}, {(st['k0'] + 8*d) * 1024}")
                a(f"s_add_u32 m0, s{sLw}, {base + d*1024}")
                a("s_nop 0")
                a.vmem(f"buffer_load_dwordx4 v{vQsrc}, {srd(sWQ)}, s{sSoff} offen lds", ('D', st['n']))
            else:
                a(f"s_add_u32 m0, s{sLw}, {base + d*1024}")
                off = (st['k0'] + 16 * d) * 32
                a(f"v_add_co_u32 v{vT+14}, vcc, {off}, v{vT+12}")
                a("s_nop 1")
                a(f"v_addc_co_u32 v{vT+15}, vcc, 0, v{vT+13}, vcc")
                a.vmem(f"global_load_lds_dwordx4 v[{vT+14}:{vT+15}], off", ('D', st['n']))
        out.append(f)
    return out

def read_ops(st, step, buf, ks0, with_xn):
    slot = st['slot']; ty = st['type']; out = []
    for k in range(4):
        ks = 4 * step + k; l = []
        for sec in range(2):
            so = 0 if slot == 4 else slot * 16384
            if ty == 'z': va = vAz2 if slot == 4 else vAz; off = so + (4 * ks + sec) * 1024
            elif ty == 'q': va = vAq2 if slot == 4 else vAq; off = so + (4 * ks + sec) * 512
            else: va = vAz2 if slot == 4 else vAz; off = so + (4 * ks + sec) * 256
            l.append(f"ds_read_b64_tr_b16 {vr(buf + 4*k + 2*sec, 2)}, v{va} offset:{off}")
        if with_xn:
            kk = ks0 + k
            l.append(f"ds_read_b128 {vr(XN + 4*kk, 4)}, v{vX0 + kk % 4} offset:{(kk // 4) * 4096 + (kk % 4) * 1024}")
        out.append(l)
    return out

def pack16_ops(base, dst): return [f"v_cvt_pk_bf16_f32 v{dst+q}, v{base+2*q}, v{base+2*q+1}" for q in range(8)]

def z2_stats_ops():
    ops = gelu_ops(ZV, 16, vT)
    s, q = vT + 4, vT + 5
    ops += [f"v_add_f32 v{s}, v{ZV}, v{ZV+1}", f"v_mul_f32 v{q}, v{ZV}, v{ZV}", f"v_fmac_f32 v{q}, v{ZV+1}, v{ZV+1}"]
    for k in range(2, 16):
        ops += [f"v_add_f32 v{s}, v{s}, v{ZV+k}", f"v_fmac_f32 v{q}, v{ZV+k}, v{ZV+k}"]
    ops += [f"v_mov_b32 v{vT+6}, v{s}", f"v_mov_b32 v{vT+7}, v{q}",
            f"s_lshl_b32 s{sT}, s{sLO}, 9", f"s_lshl_b32 s{sT+1}, s{sHI}, 8",
            f"v_permlane32_swap_b32 v{s}, v{vT+6}", f"v_permlane32_swap_b32 v{q}, v{vT+7}",
            f"s_add_u32 s{sT}, s{sT}, s{sT+1}", f"s_add_u32 s{sT}, s{sT}, {LDS_STAT}",
            f"v_add_f32 v{s}, v{s}, v{vT+6}", f"v_add_f32 v{q}, v{q}, v{vT+7}",
            f"v_lshlrev_b32 v{vT+6}, 3, v{vN}", f"v_add_u32 v{vT+6}, s{sT}, v{vT+6}",
            f"ds_write_b64 v{vT+6}, {vr(s,2)}"]
    return ops

def z1_ops():
    return gelu_ops(A1, 16, vT) + pack16_ops(A1, Z1T)

def publish_stats(a, L):
    a(f"s_cmp_eq_u32 s{sW}, 0")
    a(f"s_cbranch_scc0 {L}_pub")
    t = vT + 8
    a(f"v_lshlrev_b32 v{t}, 3, v{vL}")
    a(f"v_add_u32 v{t+1}, {LDS_STAT}, v{t}")
    for g in range(4): a(f"ds_read_b64 {vr(t+2+2*g,2)}, v{t+1} offset:{g*512}")
    a("s_waitcnt lgkmcnt(0)")
    for g in range(1, 4):
        a(f"v_add_f32 v{t+2}, v{t+2}, v{t+2+2*g}")
        a(f"v_add_f32 v{t+3}, v{t+3}, v{t+3+2*g}")
    a(f"s_mul_i32 s{sT}, s{sI}, 7")
    a(f"s_add_u32 s{sT}, s{sT}, s{sJ}")
    a(f"s_lshl_b32 s{sT}, s{sT}, 9")
    a(f"s_add_u32 s{sT}, s{sT}, {WS_ST}")
    a(f"buffer_store_dwordx2 {vr(t+2,2)}, v{t}, {srd(sWS)}, s{sT} offen sc1")
    a("s_waitcnt vmcnt(0)")
    flag_set(a, 0, t)
    a.label(f"{L}_pub")

def epi_q(a):
    a("s_nop 7"); a("s_nop 7")
    a(f"s_mov_b32 s{sT}, {f2u(QSCALE)}")
    for k in range(16): a(f"v_mul_f32 v{AQ+k}, s{sT}, v{AQ+k}")
    for o in pack16_ops(AQ, vT): a(o)
    a(f"s_lshl_b32 s{sT}, s{sHI}, 12")
    a(f"s_and_b32 s{sT+1}, s{sW}, 1")
    a(f"s_lshl_b32 s{sT+1}, s{sT+1}, 11")
    a(f"s_add_u32 s{sT}, s{sT}, s{sT+1}")
    a(f"s_add_u32 s{sT}, s{sT}, {LDS_Q}")
    a(f"v_lshlrev_b32 v{vT+8}, 4, v{vL}")
    a(f"v_add_u32 v{vT+8}, s{sT}, v{vT+8}")
    a(f"ds_write_b128 v{vT+8}, {vr(vT,4)}")
    a(f"ds_write_b128 v{vT+8}, {vr(vT+4,4)} offset:1024")
    a("s_waitcnt lgkmcnt(0)")

def epi_kv(a):
    a("s_nop 7"); a("s_nop 7")
    for o in pack16_ops(AQ, vT): a(o)
    a(f"s_lshl_b32 s{sT}, s{sI}, 1")
    a(f"s_add_u32 s{sT}, s{sT}, s{sHI}")
    a(f"s_lshl_b32 s{sT}, s{sT}, 10")
    a(f"s_add_u32 s{sT+1}, s{sT}, {WS_KF}")
    a(f"s_add_u32 s{sT+2}, s{sT}, {WS_VF}")
    a(f"v_lshlrev_b32 v{vT+8}, 4, v{vL}")
    a(f"buffer_store_dwordx4 {vr(vT,4)}, v{vT+8}, {srd(sWS)}, s{sT+1} offen sc1")
    a(f"s_mul_i32 s{sT+3}, s{sHI}, 1280")
    a(f"s_add_u32 s{sT+3}, s{sT+3}, {LDS_TRKV}")
    a(f"v_mul_u32_u24 v{vT+9}, 40, v{vN}")
    a(f"v_lshl_add_u32 v{vT+9}, v{vH}, 3, v{vT+9}")
    a(f"v_add_u32 v{vT+9}, s{sT+3}, v{vT+9}")
    a(f"ds_write_b64 v{vT+9}, {vr(vT+4,2)}")
    a(f"ds_write_b64 v{vT+9}, {vr(vT+6,2)} offset:16")
    a(f"v_lshrrev_b32 v{vT+10}, 4, v{vL}")
    a(f"v_lshrrev_b32 v{vT+11}, 1, v{vT+10}")
    a(f"v_and_b32 v{vT+10}, 1, v{vT+10}")
    a(f"v_lshlrev_b32 v{vT+11}, 4, v{vT+11}")
    a(f"v_lshl_add_u32 v{vT+11}, v{vT+10}, 2, v{vT+11}")
    a(f"v_bfe_u32 v{vT+10}, v{vL}, 2, 2")
    a(f"v_add_u32 v{vT+11}, v{vT+11}, v{vT+10}")
    a(f"v_mul_u32_u24 v{vT+11}, 40, v{vT+11}")
    a(f"v_and_b32 v{vT+10}, 3, v{vL}")
    a(f"v_lshl_add_u32 v{vT+11}, v{vT+10}, 3, v{vT+11}")
    a(f"v_add_u32 v{vT+11}, s{sT+3}, v{vT+11}")
    a("s_waitcnt lgkmcnt(0)")
    a(f"ds_read_b64_tr_b16 {vr(vT+4,2)}, v{vT+11}")
    a(f"ds_read_b64_tr_b16 {vr(vT+6,2)}, v{vT+11} offset:{8*40}")
    a("s_waitcnt lgkmcnt(0)")
    a(f"buffer_store_dwordx4 {vr(vT+4,4)}, v{vT+8}, {srd(sWS)}, s{sT+2} offen sc1")
    a("s_waitcnt vmcnt(0)")

def z2_finish(a, L):
    a(f"s_cmp_eq_u32 s{sW}, 0")
    a(f"s_cbranch_scc0 {L}_w")
    wait_cleared(a, L, vT)
    a(f"s_lshl_b32 s{sT}, s{sI}, 10")
    a(f"s_add_u32 s{sT}, s{sT}, {WS_FL}")
    a(f"v_lshlrev_b32 v{vT}, 7, v{vL}")
    a(f"v_add_u32 v{vT}, s{sT}, v{vT}")
    a(f"v_min_u32 v{vT}, {WS_END - 4}, v{vT}")
    poll(a, L + "_st", vT, vT + 1, 7)
    a(f"s_mul_i32 s{sT}, s{sI}, {7*512}")
    a(f"s_add_u32 s{sT}, s{sT}, {WS_ST}")
    a(f"v_lshlrev_b32 v{vT}, 3, v{vL}")
    for g in range(7): a(f"buffer_load_dwordx2 {vr(vT+2+2*g,2)}, v{vT}, {srd(sWS)}, s{sT} offen offset:{g*512} sc1")
    a("s_waitcnt vmcnt(0)")
    for g in range(1, 7):
        a(f"v_add_f32 v{vT+2}, v{vT+2}, v{vT+2+2*g}")
        a(f"v_add_f32 v{vT+3}, v{vT+3}, v{vT+3+2*g}")
    a(f"v_mul_f32 v{vT+2}, {f2u(1/896)}, v{vT+2}")
    a(f"v_mul_f32 v{vT+3}, {f2u(1/896)}, v{vT+3}")
    a(f"v_fma_f32 v{vT+3}, -v{vT+2}, v{vT+2}, v{vT+3}")
    a(f"v_max_f32 v{vT+3}, 0, v{vT+3}")
    a(f"v_add_f32 v{vT+3}, {f2u(1e-5)}, v{vT+3}")
    a(f"v_rsq_f32 v{vT+3}, v{vT+3}")
    a("s_nop 0")
    a(f"v_mul_f32 v{vT+2}, v{vT+2}, v{vT+3}")
    a(f"v_sub_f32 v{vT+2}, 0, v{vT+2}")
    a(f"v_add_u32 v{vT}, {LDS_MR}, v{vT}")
    a(f"ds_write_b64 v{vT}, {vr(vT+2,2)}")
    a("s_waitcnt lgkmcnt(0)")
    a.label(f"{L}_w")
    a("s_barrier")
    a(f"s_lshl_b32 s{sT}, s{sHI}, 8")
    a(f"s_add_u32 s{sT}, s{sT}, {LDS_MR}")
    a(f"v_lshlrev_b32 v{vT}, 3, v{vN}")
    a(f"v_add_u32 v{vT}, s{sT}, v{vT}")
    a(f"ds_read_b64 {vr(vT+2,2)}, v{vT}")
    a(f"s_mul_i32 s{sT+3}, s{sW}, 2304")
    a(f"s_add_u32 s{sT+3}, s{sT+3}, {LDS_TR}")
    a(f"v_mul_u32_u24 v{vT+4}, 72, v{vN}")
    a(f"v_lshl_add_u32 v{vT+4}, v{vH}, 3, v{vT+4}")
    a(f"v_add_u32 v{vT+4}, s{sT+3}, v{vT+4}")
    a(f"v_bfe_u32 v{vT+5}, v{vL}, 2, 2")
    a(f"v_lshl_add_u32 v{vT+5}, v{vH}, 3, v{vT+5}")
    a(f"v_mul_u32_u24 v{vT+5}, 72, v{vT+5}")
    a(f"v_bfe_u32 v{vT+6}, v{vL}, 4, 1")
    a(f"v_lshl_add_u32 v{vT+5}, v{vT+6}, 5, v{vT+5}")
    a(f"v_and_b32 v{vT+6}, 3, v{vL}")
    a(f"v_lshl_add_u32 v{vT+5}, v{vT+6}, 3, v{vT+5}")
    a(f"v_add_u32 v{vT+5}, s{sT+3}, v{vT+5}")
    a("s_waitcnt lgkmcnt(0)")
    for k in range(16): a(f"v_fma_f32 v{ZV+k}, v{ZV+k}, v{vT+3}, v{vT+2}")
    for o in pack16_ops(ZV, BUF0): a(o)
    for g in range(4): a(f"ds_write_b64 v{vT+4}, {vr(BUF0+2*g,2)} offset:{16*g}")
    a(f"s_lshl_b32 s{sT}, s{sJ}, 2")
    a(f"s_add_u32 s{sT}, s{sT}, s{sLO}")
    a(f"s_lshl_b32 s{sT}, s{sT}, 7")
    a(f"s_lshl_b32 s{sT+1}, s{sI}, 2")
    a(f"s_add_u32 s{sT}, s{sT}, s{sT+1}")
    a(f"s_lshl_b32 s{sT+1}, s{sHI}, 1")
    a(f"s_add_u32 s{sT}, s{sT}, s{sT+1}")
    a(f"s_lshl_b32 s{sT}, s{sT}, 10")
    a(f"s_add_u32 s{sT}, s{sT}, {WS_Z2}")
    a(f"v_lshlrev_b32 v{vT+8}, 4, v{vL}")
    a("s_waitcnt lgkmcnt(0)")
    for ks in range(2):
        a(f"ds_read_b64_tr_b16 {vr(BUF1+4*ks,2)}, v{vT+5} offset:{16*ks*72}")
        a(f"ds_read_b64_tr_b16 {vr(BUF1+4*ks+2,2)}, v{vT+5} offset:{(16*ks+4)*72}")
    a("s_waitcnt lgkmcnt(0)")
    a(f"buffer_store_dwordx4 {vr(BUF1,4)}, v{vT+8}, {srd(sWS)}, s{sT} offen sc1")
    a(f"buffer_store_dwordx4 {vr(BUF1+4,4)}, v{vT+8}, {srd(sWS)}, s{sT} offen offset:1024 sc1")

def run_stages(a, L, stages, jl7):
    DIST = 4
    steps = []
    for st in stages:
        for s in range({'z': 1, 'q': 2, 'kv': 4}[st['type']]): steps.append(dict(st=st, step=s, first=(s == 0)))
    kc = {}
    for sp in steps:
        p = sp['st']['pass']; sp['ks0'] = kc.get(p, 0); kc[p] = sp['ks0'] + 4
    guard = {'z2': None, 'z1': None, 'q': sQW, 'kv': sKVW}
    bg = []
    bg_delay = 0
    prev = None
    nsteps = len(steps)
    for t, sp in enumerate(steps + [None]):
        dm = []
        if sp is not None and sp['first']:
            n = sp['st']['n']
            a.c(f"==== stage {n} ({sp['st']['type']}/{sp['st']['pass']}) ====")
            a.wait(vm=('D', n))
            a("s_barrier")
            if n + DIST < len(stages): dm = dma_ops(a, stages[n + DIST])
            if sp['st'].get('publish'): publish_stats(a, L)
        buf = BUF0 if t % 2 == 0 else BUF1
        pbuf = BUF1 if t % 2 == 0 else BUF0
        rd = read_ops(sp['st'], sp['step'], buf, sp['ks0'], sp['st']['pass'] == 'z2' or jl7) if sp else [[], [], [], []]
        gr = guard[sp['st']['pass']] if sp else None
        gm = guard[prev['st']['pass']] if prev else None
        share = []
        if bg and bg_delay == 0:
            k = sp['st'].get('bgrate', 20) if sp else len(bg)
            share = bg[:k]; bg[:] = bg[k:]
        elif bg_delay: bg_delay -= 1
        def mf(k):
            p = prev['st']['pass']; acc = {'z2': ZV, 'z1': A1, 'q': AQ, 'kv': AQ}[p]
            ks = prev['ks0'] + k
            mfma(a, acc, pbuf + 4 * k, XN + 4 * ks, None if ks == 0 else acc)
        def body(do_r, do_m):
            q4 = [share[(len(share) * k) // 4:(len(share) * (k + 1)) // 4] for k in range(4)]
            for k in range(4):
                if do_r:
                    for r in rd[k]: a(r)
                if do_m: mf(k)
                if k < len(dm): dm[k]()
                for o in q4[k]: a(o)
        if gr is None and gm is None:
            body(sp is not None, prev is not None)
        else:
            g = gr if gr is not None else gm
            same = (gr == gm) or gr is None or gm is None
            vm0 = a.vm.copy()
            if gr is not None and gm is not None and gr != gm:
                a(f"s_cmp_eq_u32 s{gm}, 0"); a(f"s_cbranch_scc1 {L}_m{t}")
                for k in range(4): mf(k)
                a.label(f"{L}_m{t}")
                a(f"s_cmp_eq_u32 s{gr}, 0"); a(f"s_cbranch_scc1 {L}_r{t}")
                for k in range(4):
                    for r in rd[k]: a(r)
                a.label(f"{L}_r{t}")
                for f in dm: f()
                for o in share: a(o)
            elif gr is None:
                a(f"s_cmp_eq_u32 s{gm}, 0"); a(f"s_cbranch_scc1 {L}_m{t}")
                for k in range(4): mf(k)
                a.label(f"{L}_m{t}")
                for f in dm: f()
                for o in share: a(o)
            else:
                a(f"s_cmp_eq_u32 s{gr}, 0"); a(f"s_cbranch_scc1 {L}_n{t}")
                body(True, prev is not None)
                a(f"s_branch {L}_e{t}")
                a.label(f"{L}_n{t}")
                a.vm = vm0
                if prev is not None and gm is None:
                    body(False, True)
                else:
                    for f in dm: f()
                    for o in share: a(o)
                a.label(f"{L}_e{t}")
        a.wait_all(vm=False, lg=True)
        if prev is not None and (sp is None or sp['st']['pass'] != prev['st']['pass']):
            p = prev['st']['pass']
            if p == 'z2': bg = z2_stats_ops(); bg_delay = 0; bg = ["s_nop 7", "s_nop 7"] + bg
            elif p == 'z1': bg = ["s_nop 7", "s_nop 7"] + z1_ops()
            else:
                g = guard[p]
                a(f"s_cmp_eq_u32 s{g}, 0"); a(f"s_cbranch_scc1 {L}_x{t}")
                if p == 'q': epi_q(a)
                else: epi_kv(a)
                a.label(f"{L}_x{t}")
        prev = sp
    for o in bg: a(o)

def p1_common(a):
    t = vT + 8
    r, c16, un = t, t + 1, t + 2
    a(f"v_bfe_u32 v{r}, v{vL}, 2, 2")
    a(f"v_and_b32 v{c16}, 3, v{vL}")
    a(f"v_lshrrev_b32 v{un}, 4, v{vL}")
    a(f"s_lshl_b32 s{sT}, s{sW}, 3")
    a(f"v_add_u32 v{vZsrc}, s{sT}, v{r}")
    a(f"v_mul_u32_u24 v{vZsrc}, 3584, v{vZsrc}")
    a(f"v_lshl_add_u32 v{vZsrc}, v{un}, 6, v{vZsrc}")
    a(f"v_lshl_add_u32 v{vZsrc}, v{c16}, 4, v{vZsrc}")
    a(f"v_lshrrev_b32 v{t+3}, 1, v{un}")
    a(f"v_lshl_add_u32 v{t+3}, v{t+3}, 2, v{r}")
    a(f"s_lshl_b32 s{sT}, s{sW}, 4")
    a(f"v_add_u32 v{t+3}, s{sT}, v{t+3}")
    a(f"v_lshlrev_b32 v{vQsrc}, 10, v{t+3}")
    a(f"v_and_b32 v{t+3}, 1, v{un}")
    a(f"v_lshl_add_u32 v{vQsrc}, v{t+3}, 6, v{vQsrc}")
    a(f"v_lshl_add_u32 v{vQsrc}, v{c16}, 4, v{vQsrc}")
    a(f"s_lshl_b32 s{sZc}, s{sJ}, 8")
    a(f"s_lshl_b32 s{sQc}, s{sJ}, 7")
    a(f"s_lshl_b32 s{sLw}, s{sW}, 11")
    cm = t + 3
    a(f"v_lshlrev_b32 v{cm}, 6, v{r}")
    a(f"v_and_b32 v{t+4}, 1, v{un}")
    a(f"v_lshl_add_u32 v{cm}, v{t+4}, 5, v{cm}")
    a(f"v_lshl_add_u32 v{cm}, v{c16}, 3, v{cm}")
    a(f"v_lshlrev_b32 v{vAz}, 11, v{vH}")
    a(f"s_lshl_b32 s{sT}, s{sLO}, 8")
    a(f"v_add3_u32 v{vAz}, v{vAz}, s{sT}, v{cm}")
    a(f"v_lshlrev_b32 v{vAq}, 10, v{vH}")
    a(f"s_and_b32 s{sT}, s{sW}, 1")
    a(f"s_lshl_b32 s{sT}, s{sT}, 8")
    a(f"v_add3_u32 v{vAq}, v{vAq}, s{sT}, v{cm}")
    a(f"v_add_u32 v{vAq2}, {LDS_S4}, v{vAq}")
    a(f"s_lshl_b32 s{sT}, s{sHI}, 15")
    a(f"s_add_u32 s{sT}, s{sT}, {LDS_XN}")
    for k in range(4):
        a(f"v_add_u32 v{t+4}, {2*k}, v{vH}")
        a(f"v_xor_b32 v{t+4}, v{t+4}, v{vN}")
        a(f"v_lshlrev_b32 v{t+4}, 4, v{t+4}")
        a(f"v_lshl_add_u32 v{t+4}, v{vH}, 9, v{t+4}")
        a(f"v_add_u32 v{vX0+k}, s{sT}, v{t+4}")
    a(f"s_mov_b32 s{sC1}, {f2u(GELU_C1)}")
    a(f"v_mov_b32 v{vC0}, {f2u(GELU_C0)}")
    a(f"s_lshl_b32 s{sT}, 1, s{sW}")
    a(f"s_and_b32 s{sQW}, s{sT}, 0xc3")
    a(f"s_and_b32 s{sKVW}, s{sT}, 0x24")
    return r, c16, un, cm

def phase1(a, name, j7, regs):
    r, c16, un, cm = regs
    t = vT + 8
    L = name
    if not j7:
        a(f"v_add_u32 v{vAz2}, {LDS_S4}, v{vAz}")
        stages = []
        for n in range(8): stages.append(dict(type='z', k0=64*n, colb=896*2, n=n, slot=n % 5, **{'pass': 'z2'}))
        for n in range(8): stages.append(dict(type='z', k0=64*n, colb=0, n=8+n, slot=(8+n) % 5, bgrate=CFG.get('bg2', 40), **{'pass': 'z1'}))
        for n in range(4): stages.append(dict(type='q', k0=128*n, n=16+n, slot=(16+n) % 5, bgrate=20, **{'pass': 'q'}))
        stages[CFG.get('pubst', 13)]['publish'] = True
    else:
        a(f"v_lshlrev_b32 v{vAz}, 9, v{vH}")
        a(f"v_add_u32 v{vAz}, v{vAz}, v{cm}")
        a(f"v_add_u32 v{vAz2}, {LDS_S4}, v{vAz}")
        a(f"v_lshl_add_u32 v{t+8}, v{un}, 2, v{r}")
        a(f"s_lshl_b32 s{sT}, s{sW}, 5")
        a(f"v_add_u32 v{t+8}, s{sT}, v{t+8}")
        a(f"v_lshlrev_b32 v{t+8}, 5, v{t+8}")
        a(f"v_and_b32 v{t+9}, 1, v{c16}")
        a(f"v_lshl_add_u32 v{t+8}, v{t+9}, 4, v{t+8}")
        a(f"v_cmp_gt_u32 vcc, 2, v{c16}")
        a(f"v_mov_b32 v{vT+12}, s{sWV}")
        a(f"v_mov_b32 v{vT+13}, s{sWV+1}")
        a(f"v_mov_b32 v{vT+14}, s{sWK}")
        a(f"v_mov_b32 v{vT+15}, s{sWK+1}")
        a(f"v_cndmask_b32 v{vT+12}, v{vT+12}, v{vT+14}, vcc")
        a(f"v_cndmask_b32 v{vT+13}, v{vT+13}, v{vT+15}, vcc")
        a(f"v_add_co_u32 v{vT+12}, vcc, v{vT+12}, v{t+8}")
        a("s_nop 1")
        a(f"v_addc_co_u32 v{vT+13}, vcc, 0, v{vT+13}, vcc")
        stages = []
        for n in range(2): stages.append(dict(type='kv', k0=256*n, n=n, slot=n % 5, **{'pass': 'kv'}))
        for n in range(4): stages.append(dict(type='q', k0=128*n, n=2+n, slot=(2+n) % 5, **{'pass': 'q'}))
    for n in range(4):
        for f in dma_ops(a, stages[n]): f()
    clear_flags(a, L)
    rstamp(a, 1)
    ln1_compute(a)
    a.wait(lg='xw')
    rstamp(a, 2)
    run_stages(a, L, stages, j7)
    rstamp(a, 3)
    if j7:
        a("s_barrier")
        a(f"s_cmp_eq_u32 s{sW}, 0")
        a(f"s_cbranch_scc0 {L}_kvp")
        flag_set(a, 1, vT)
        a.label(f"{L}_kvp")

def dma_kv(a, tag): a.vmem(f"buffer_load_dwordx4 v{vKVsrc}, {srd(sWS)}, s{sKVoff} offen{SC()} lds", tag)
def dma_w(a, tag): a.vmem(f"buffer_load_dwordx4 v{vWsrc}, {srd(sWSP)}, s{sWoff} offen lds", tag)
def advance_dma(a):
    a(f"s_add_u32 s{sDma}, s{sDma}, {SLOT}")
    a(f"s_cmp_eq_u32 s{sDma}, {8*SLOT}")
    a(f"s_cselect_b32 s{sDma}, 0, s{sDma}")
def wo_dma(a, s):
    a(f"s_lshl_b32 s{sT}, s{sLO}, 14")
    a(f"s_lshl_b32 s{sT+1}, s{sHI}, 10")
    a(f"s_add_u32 s{sT+1}, s{sT+1}, s{sT}")
    a(f"s_add_u32 m0, s{sT+1}, {LDS_WO + s*2048}")
    a(f"s_lshl_b32 s{sT}, s{sLO}, 17")
    a(f"s_add_u32 s{sT}, s{sT}, {s*16384}")
    a.vmem(f"buffer_load_dwordx4 v{vW3}, {srd(sWO)}, s{sT} offen lds", ('WO', s))
def wout_dma(a, s):
    if s < 12:
        a(f"s_mul_i32 s{sT}, s{sLO}, {12*2048}"); base = s * 2048
    else:
        a(f"s_lshl_b32 s{sT}, s{sLO}, 14"); base = LDS_WO + (s - 12) * 2048
    a(f"s_lshl_b32 s{sT+1}, s{sHI}, 10")
    a(f"s_add_u32 s{sT+1}, s{sT+1}, s{sT}")
    a(f"s_add_u32 m0, s{sT+1}, {base}")
    a(f"s_mul_i32 s{sT}, s{sLO}, {14*16384}")
    a(f"s_add_u32 s{sT}, s{sT}, {s*16384}")
    a.vmem(f"buffer_load_dwordx4 v{vW3}, {srd(sWOUT)}, s{sT} offen lds", ('WH', s))

def stage(a, u, x, gemm, do_dma, do_z, last, extra=None):
    off = u * SLOT
    zk0, zk1 = Z + 8 * u, Z + 8 * u + 4
    a.c(f"---- stage u={u} ----")
    a("s_barrier")
    def M16(): a(f"s_mov_b64 exec, s[{sM16}:{sM16+1}]")
    def MALL(): a("s_mov_b64 exec, -1")
    if gemm:
        pats = {0: ["e0 e1 e2 e3", "e4 e5 c0 e6 c1", "e7 c2 c3 e8 e9", "e10 e11 c4 e12 c5", "e13 e14 e15 c6 c7"],
                1: ["e0 e1 e2 e3", "e4 e5 c0 c1 e6", "e7 c2 c3 e8 e9", "e10 e11 c4 c5 e12", "e13 e14 e15 c6 c7"]}
        groups = [g.split() for g in pats[CFG['pat']]]
    else:
        groups = [g.split() for g in ["e0 e1 e2 e3 e4 c0 e5 c1", "e6 e7 c2 c3 e8 e9 e10 c4", "", "e11 e12 c5 e13 e14 e15 c6 c7", ""]]
    def phase(S, mf, side):
        for k in range(5):
            if mf[k]: mf[k]()
            for f in side.get((k, -1), []): f()
            for p, tok in enumerate(groups[k]):
                n = int(tok[1:])
                if tok[0] == 'e': a(f"v_exp_f32 v{S+n}, v{S+n}")
                else: a(f"v_cvt_pk_bf16_f32 v{P+n}, v{S+2*n}, v{S+2*n+1}")
                for f in side.get((k, p), []): f()
    def rd(reg, addr, o, tag, masked=False):
        def f():
            if masked: M16()
            a.ds(f"ds_read_b128 {vr(reg,4)}, v{addr} offset:{o}", tag)
            if masked: MALL()
        return f
    def mm(D, A, B, C, vm=None, lg=None):
        def f():
            a.wait(vm=vm, lg=lg); mfma(a, D, A, B, C)
        return f
    def zload(reg, o, tag, adv):
        def f():
            a.vmem(f"buffer_load_dwordx4 {vr(reg,4)}, v{vZs2}, {srd(sWS)}, s{sZoff} offen offset:{o}{SC()}", tag)
            if adv: a(f"s_add_u32 s{sZoff}, s{sZoff}, 4096")
        return f
    def dmaw0(): a(f"s_add_u32 m0, s{sDma}, s{sMW}")
    def dmaw1():
        dma_w(a, ('D', x + 6)); a(f"s_add_u32 s{sWoff}, s{sWoff}, 128")
    def dmakv0(): a(f"s_add_u32 m0, s{sDma}, s{sMKV}")
    def v1_and_kv():
        M16()
        a.ds(f"ds_read_b128 {vr(V1,4)}, v{vVrd} offset:{off+1024}", ('V1', x))
        if do_dma: dma_kv(a, ('D', x + 6))
        MALL()
    def adv():
        a(f"s_add_u32 s{sKVoff}, s{sKVoff}, 2048"); advance_dma(a)
    side = {}
    def add(k, p, f): side.setdefault((k, p), []).append(f)
    mfA = [mm(S1, KF, Q1, NM1, lg=('K', x)),
           mm(O1, V1, P + 4, O1),
           mm(G0, zk0, W0, G0, vm=('Z', x, 0), lg=('W', x, 0, 0)) if gemm else None,
           mm(O0, V0, P, O0, lg=('V0', x)),
           mm(G1, zk0, W1, G1, lg=('W', x, 1, 0)) if gemm else None]
    if not last: add(0, 0, rd(KF, vKrd, off, ('K', x + 1)))
    if gemm: add(0, 1, rd(W0, vWA0, off, ('W', x, 0, 0)))
    if do_dma and gemm:
        add(0, 2, dmaw0); add(0, 3, dmaw1)
    if do_dma: add(1, -1, dmakv0)
    add(1, 0, v1_and_kv)
    if do_dma: add(1, 1, adv)
    if gemm:
        add(1, 3, rd(W1, vWA0, off + 4096, ('W', x, 1, 0)))
        add(2, 0, rd(W0, vWA1, off, ('W', x, 0, 1)))
        if do_z: add(4, 0, zload(zk0, 0, ('Z', x + 4, 0), False))
        add(4, 1, rd(W1, vWA1, off + 4096, ('W', x, 1, 1)))
    phase(S0, mfA, side)
    side = {}
    mfB = [mm(S0, KF, Q0, NM0, lg=('K', x + 1)) if not last else None,
           mm(O0, V1, P + 4, O0, lg=('V1', x)),
           mm(G0, zk1, W0, G0, vm=('Z', x, 1), lg=('W', x, 0, 1)) if gemm else None,
           mm(O1, V0, P, O1),
           mm(G1, zk1, W1, G1, lg=('W', x, 1, 1)) if gemm else None]
    if extra: add(0, 0, extra)
    if not last: add(3, 0, rd(V0, vVrd, off, ('V0', x + 1), masked=True))
    if gemm and do_z: add(4, 0, zload(zk1, 1024, ('Z', x + 4, 1), True))
    phase(S1, mfB, side)
    a.wait(vm=('D', x + 1))

def toggle(a, gemm):
    for r in [vKrd, vVrd] + ([vWA0, vWA1] if gemm else []): a(f"v_add_u32 v{r}, s{sTog}, v{r}")
    a(f"s_sub_u32 s{sTog}, 0, s{sTog}")

def p2_addresses(a):
    l, h, n, t = vL, vH, vN, T0
    a(f"v_lshrrev_b32 v{t}, 3, v{l}")
    a(f"s_lshl_b32 s{sT}, s{sI}, 6")
    a(f"s_lshl_b32 s{sT+1}, s{sW}, 3")
    a(f"s_add_u32 s{sT}, s{sT}, s{sT+1}")
    a(f"v_add_u32 v{t}, s{sT}, v{t}")
    a(f"v_lshlrev_b32 v{vWsrc}, 12, v{t}")
    a(f"s_and_b32 s{sT}, s{sW}, 1")
    a(f"s_lshl_b32 s{sT}, s{sT}, 2")
    a(f"v_lshrrev_b32 v{t}, 4, v{l}")
    a(f"v_add_u32 v{t}, s{sT}, v{t}")
    a(f"v_xor_b32 v{t}, v{t}, v{l}")
    a(f"v_and_b32 v{t}, 7, v{t}")
    a(f"v_lshlrev_b32 v{t}, 4, v{t}")
    a(f"v_add_u32 v{vWsrc}, v{vWsrc}, v{t}")
    a(f"v_and_b32 v{t}, 15, v{l}")
    a(f"v_lshlrev_b32 v{t}, 4, v{t}")
    a(f"s_and_b32 s{sT}, s{sW}, 1")
    a(f"s_lshl_b32 s{sT}, s{sT}, 8")
    a(f"v_add_u32 v{t}, s{sT}, v{t}")
    a(f"s_lshr_b32 s{sT+1}, s{sW}, 1")
    a(f"s_cmp_lt_u32 s{sT+1}, 2")
    a(f"s_cselect_b32 s{sT+2}, 9, 10")
    a(f"v_lshlrev_b32 v{vKVsrc}, s{sT+2}, v{h}")
    a(f"v_add_u32 v{vKVsrc}, v{vKVsrc}, v{t}")
    a(f"s_lshl_b32 s{sT+2}, s{sT+1}, 10")
    a(f"s_add_u32 s{sT+2}, s{sT+2}, {WS_KF}")
    a(f"s_mov_b32 s{sT+3}, {WS_VF}")
    a(f"s_cmp_eq_u32 s{sT+1}, 2")
    a(f"s_cselect_b32 s{sT+2}, s{sT+3}, s{sT+2}")
    a(f"s_mov_b32 s{sT+3}, {WS_VF - 2048 + 512}")
    a(f"s_cmp_eq_u32 s{sT+1}, 3")
    a(f"s_cselect_b32 s{sT+2}, s{sT+3}, s{sT+2}")
    a(f"v_add_u32 v{vKVsrc}, s{sT+2}, v{vKVsrc}")
    a(f"s_mov_b32 s{sKVoff}, 0")
    a(f"s_mov_b32 s{sWoff}, 0")
    a(f"s_mov_b32 s{sZoff}, 0")
    a(f"s_lshl_b32 s{sMW}, s{sW}, 10")
    a(f"s_lshl_b32 s{sMKV}, s{sT+1}, 10")
    a(f"s_add_u32 s{sMKV}, s{sMKV}, s{sT}")
    a(f"s_add_u32 s{sMKV}, s{sMKV}, 8192")
    a(f"s_lshl_b32 s{sT}, s{sJ}, 2")
    a(f"s_add_u32 s{sT}, s{sT}, s{sLO}")
    a(f"s_lshl_b32 s{sT}, s{sT}, 7")
    a(f"s_lshl_b32 s{sT+1}, s{sHI}, 1")
    a(f"s_add_u32 s{sT}, s{sT}, s{sT+1}")
    a(f"s_lshl_b32 s{sT}, s{sT}, 10")
    a(f"s_add_u32 s{sT}, s{sT}, {WS_Z2}")
    a(f"v_lshlrev_b32 v{t}, 4, v{l}")
    a(f"v_add_u32 v{vZs2}, s{sT}, v{t}")
    a(f"s_lshl_b32 s{sT}, s{sHI}, 10")
    a(f"s_add_u32 s{sT}, s{sT}, 8192")
    a(f"v_add_u32 v{vKrd}, s{sT}, v{t}")
    a(f"v_and_b32 v{t}, 15, v{l}")
    a(f"v_lshlrev_b32 v{t}, 4, v{t}")
    a(f"v_lshlrev_b32 v{vVrd}, 8, v{h}")
    a(f"v_add_u32 v{vVrd}, v{vVrd}, v{t}")
    a(f"s_lshl_b32 s{sT}, s{sHI}, 9")
    a(f"s_add_u32 s{sT}, s{sT}, 10240")
    a(f"v_add_u32 v{vVrd}, s{sT}, v{vVrd}")
    a(f"v_lshrrev_b32 v{t}, 1, v{n}")
    a(f"s_lshl_b32 s{sT}, s{sHI}, 2")
    a(f"v_add_u32 v{vWA0}, s{sT}, v{h}")
    a(f"v_xor_b32 v{vWA0}, v{vWA0}, v{t}")
    a(f"v_and_b32 v{vWA0}, 7, v{vWA0}")
    a(f"v_xor_b32 v{vWA1}, 2, v{vWA0}")
    a(f"v_lshlrev_b32 v{vWA0}, 4, v{vWA0}")
    a(f"v_lshlrev_b32 v{vWA1}, 4, v{vWA1}")
    a(f"v_lshlrev_b32 v{t}, 7, v{n}")
    a(f"v_add_u32 v{vWA0}, v{vWA0}, v{t}")
    a(f"v_add_u32 v{vWA1}, v{vWA1}, v{t}")
    r, c16, un = T0 + 1, T0 + 2, T0 + 3
    a(f"v_bfe_u32 v{r}, v{l}, 2, 2")
    a(f"v_and_b32 v{c16}, 3, v{l}")
    a(f"v_lshrrev_b32 v{un}, 4, v{l}")
    a(f"v_lshrrev_b32 v{t}, 1, v{un}")
    a(f"v_lshl_add_u32 v{t}, v{t}, 2, v{r}")
    a(f"s_lshl_b32 s{sT}, s{sHI}, 3")
    a(f"v_add_u32 v{t}, s{sT}, v{t}")
    a(f"v_lshlrev_b32 v{vW3}, 10, v{t}")
    a(f"v_and_b32 v{t}, 1, v{un}")
    a(f"v_lshl_add_u32 v{vW3}, v{t}, 6, v{vW3}")
    a(f"v_lshl_add_u32 v{vW3}, v{c16}, 4, v{vW3}")
    a(f"s_lshl_b32 s{sT}, s{sJ}, 7")
    a(f"v_add_u32 v{vW3}, s{sT}, v{vW3}")

def p2_body(a, gemm, L):
    def kv(x):
        a(f"s_add_u32 m0, s{sDma}, s{sMKV}")
        a(f"s_mov_b64 exec, s[{sM16}:{sM16+1}]")
        dma_kv(a, ('D', x))
        a("s_mov_b64 exec, -1")
        a(f"s_add_u32 s{sKVoff}, s{sKVoff}, 2048")
    def w(x):
        a(f"s_add_u32 m0, s{sDma}, s{sMW}")
        a("s_nop 0")
        dma_w(a, ('D', x))
        a(f"s_add_u32 s{sWoff}, s{sWoff}, 128")
    a(f"s_cmp_eq_u32 s{sW}, 0")
    a(f"s_cbranch_scc0 {L}_pw")
    if not gemm: wait_cleared(a, L, T0)
    a(f"v_lshlrev_b32 v{T0}, 10, v{vN}")
    a(f"v_cmp_eq_u32 vcc, 0, v{vH}")
    a(f"v_mov_b32 v{T0+1}, s{sJ}")
    a("s_nop 0")
    a(f"v_cndmask_b32 v{T0+1}, 7, v{T0+1}, vcc")
    a(f"v_lshl_add_u32 v{T0}, v{T0+1}, 7, v{T0}")
    a(f"v_add_u32 v{T0}, {WS_FL + 4}, v{T0}")
    poll(a, L + "_kz", T0, T0 + 1, 64)
    a.label(f"{L}_pw")
    a("s_barrier")
    rstamp(a, 5)
    a(f"s_lshl_b32 s{sT}, s{sLO}, 10")
    a(f"s_add_u32 s{sT}, s{sT}, {LDS_Q}")
    a(f"v_lshlrev_b32 v{T0}, 4, v{vL}")
    a(f"v_add_u32 v{T0}, s{sT}, v{T0}")
    a.ds(f"ds_read_b128 {vr(Q0,4)}, v{T0}", 'Q')
    a.ds(f"ds_read_b128 {vr(Q1,4)}, v{T0} offset:4096", 'Q')
    a(f"s_mov_b32 s{sDma}, {7*SLOT}")
    kv(-1)
    a(f"s_mov_b32 s{sDma}, 0")
    for x in (0, 1):
        if gemm: w(x)
        kv(x)
        advance_dma(a)
    for x in range(2, 6):
        if gemm: w(x)
        kv(x)
        advance_dma(a)
        if gemm:
            zk = Z + 8 * (x - 2)
            a.vmem(f"buffer_load_dwordx4 {vr(zk,4)}, v{vZs2}, {srd(sWS)}, s{sZoff} offen{SC()}", ('Z', x - 2, 0))
            a.vmem(f"buffer_load_dwordx4 {vr(zk+4,4)}, v{vZs2}, {srd(sWS)}, s{sZoff} offen offset:1024{SC()}", ('Z', x - 2, 1))
            a(f"s_add_u32 s{sZoff}, s{sZoff}, 4096")
    for r in range(16):
        a(f"v_mov_b32 v{O0+r}, 0"); a(f"v_mov_b32 v{O1+r}, 0")
        if gemm:
            a(f"v_mov_b32 v{G0+r}, 0"); a(f"v_mov_b32 v{G1+r}, 0")
    a(f"v_and_b32 v{T0}, 0x1b, v0")
    a(f"v_cmp_eq_u32 vcc, 16, v{T0}")
    a(f"v_mov_b32 v{T0+1}, 0x3f803f80")
    a("s_nop 0")
    for r in range(4):
        a(f"v_cndmask_b32 v{V0+r}, 0, v{T0+1}, vcc"); a(f"v_cndmask_b32 v{V1+r}, 0, v{T0+1}, vcc"); a(f"v_mov_b32 v{P+4+r}, 0")
    a.wait(vm=[('D', -1), ('D', 0)], lg='Q')
    a("s_barrier")
    a(f"v_lshlrev_b32 v{T0}, 4, v{vL}")
    a(f"v_add_u32 v{T0}, {7*SLOT + 8192}, v{T0}")
    a(f"v_add_u32 v{T0+1}, {7*SLOT}, v{vKrd}")
    a(f"v_add_u32 v{T0+2}, {7*SLOT}, v{vVrd}")
    a.ds(f"ds_read_b128 {vr(W0,4)}, v{T0}", 'K00')
    a.ds(f"ds_read_b128 {vr(KF,4)}, v{T0+1}", ('K', 0))
    a(f"s_mov_b64 exec, s[{sM16}:{sM16+1}]")
    a.ds(f"ds_read_b128 {vr(V0,4)}, v{T0+2}", ('V0', 0))
    a("s_mov_b64 exec, -1")
    a.wait(lg='K00')
    mfma(a, S0, W0, Q0, None)
    mfma(a, S1, W0, Q1, None)
    a("s_nop 7"); a("s_nop 7")
    for (S, NM) in ((S0, NM0), (S1, NM1)):
        t = T0 + 4
        a(f"v_max3_f32 v{t}, v{S}, v{S+1}, v{S+2}")
        for k in range(3, 15, 2): a(f"v_max3_f32 v{t}, v{t}, v{S+k}, v{S+k+1}")
        a(f"v_max_f32 v{t}, v{t}, v{S+15}")
        a(f"v_mov_b32 v{t+1}, v{t}")
        a("s_nop 1")
        a(f"v_permlane32_swap_b32 v{t}, v{t+1}")
        a("s_nop 1")
        a(f"v_max_f32 v{t}, v{t}, v{t+1}")
        for k in range(16): a(f"v_sub_f32 v{NM+k}, 0, v{t}")
    a.wait(lg=('K', 0))
    a("s_nop 1")
    mfma(a, S0, KF, Q0, NM0)
    a("s_nop 7"); a("s_nop 7")
    rstamp(a, 6)
    a(f"s_mov_b32 s{sCnt}, 6")
    a(f"s_mov_b32 s{sTog}, {HALF}")
    a.label(f"{L}_loop")
    start = len(a.lines)
    for u in range(4): stage(a, u, u, gemm, True, True, False)
    toggle(a, gemm)
    txt1 = a.lines[start:]
    a2 = Asm(); a2.vm, a2.lg = a.vm.copy(), a.lg.copy()
    for u in range(4): stage(a2, u, 4 + u, gemm, True, True, False)
    toggle(a2, gemm)
    assert a2.lines == txt1, "steady state mismatch"
    a(f"s_sub_u32 s{sCnt}, s{sCnt}, 1")
    a(f"s_cmp_lg_u32 s{sCnt}, 0")
    a(f"s_cbranch_scc1 {L}_loop")
    def retag(q, d):
        q.items = [((t[0], t[1] + d) + tuple(t[2:])) if isinstance(t, tuple) and len(t) >= 2 and isinstance(t[1], int) else t for t in q.items]
    retag(a.vm, 20); retag(a.lg, 20)
    for u in range(4): stage(a, u, 24 + u, gemm, (24 + u) <= 25, True, False, extra=(lambda s=u: wo_dma(a, s)))
    toggle(a, gemm)
    for u in range(4): stage(a, u, 28 + u, gemm, False, False, (28 + u) == 31, extra=(lambda s=4 + u: wo_dma(a, s)))
    rstamp(a, 7)
    a("s_nop 1")
    mfma(a, O1, V1, P + 4, O1)

def p2_finish(a, gemm, L):
    tb = sT + 8
    a(f"s_lshl_b32 s{tb}, s{sI}, 1")
    a(f"s_add_u32 s{tb}, s{tb}, s{sHI}")
    a(f"v_lshlrev_b32 v{T0+1}, 4, v{vL}")
    a(f"s_mul_i32 s{sT+2}, s{sW}, 7168")
    a(f"v_add_u32 v{T0+4}, s{sT+2}, v{T0+1}")
    a(f"s_xor_b32 s{sT+3}, s{sW}, 4")
    a(f"s_mul_i32 s{sT+3}, s{sT+3}, 7168")
    a(f"v_add_u32 v{T0+5}, s{sT+3}, v{T0+1}")
    a("s_nop 7"); a("s_nop 7")
    a(f"s_cmp_eq_u32 s{sHI}, 0")
    a(f"s_cbranch_scc0 {L}_x1")
    for (lab, On, Gn, Ok, Gk, Qk) in ((None, O1, G1, O0, G0, Q0), (f"{L}_x1", O0, G0, O1, G1, Q1)):
        if lab: a.label(lab)
        for q in range(3): a(f"ds_write_b128 v{T0+4}, {vr(On+4*q,4)} offset:{q*1024}")
        if gemm:
            for q in range(4): a(f"ds_write_b128 v{T0+4}, {vr(Gn+4*q,4)} offset:{(3+q)*1024}")
        for r in range(9): a(f"v_mov_b32 v{S0+r}, v{Ok+r}")
        if gemm:
            for r in range(16): a(f"v_mov_b32 v{S1+r}, v{Gk+r}")
        for r in range(4): a(f"v_mov_b32 v{KF+r}, v{Qk+r}")
        if not lab: a(f"s_branch {L}_x2")
    a.label(f"{L}_x2")
    a("s_waitcnt lgkmcnt(0)")
    a("s_barrier")
    for q in range(3): a(f"ds_read_b128 {vr(O0+4*q,4)}, v{T0+5} offset:{q*1024}")
    if gemm:
        for q in range(4): a(f"ds_read_b128 {vr(G0+4*q,4)}, v{T0+5} offset:{(3+q)*1024}")
    a("s_waitcnt lgkmcnt(0)")
    for r in range(9): a(f"v_add_f32 v{S0+r}, v{S0+r}, v{O0+r}")
    if gemm:
        for r in range(16): a(f"v_add_f32 v{S1+r}, v{S1+r}, v{G0+r}")
    a(f"v_mul_f32 v{T0+6}, 0, v{S0}")
    for r in range(1, 8): a(f"v_fma_f32 v{T0+6}, v{S0+r}, 0, v{T0+6}")
    a(f"v_cmp_u_f32 vcc, v{T0+6}, v{T0+6}")
    a(f"s_mov_b32 s{sT+2}, 0x5f800000")
    a(f"v_cmp_nle_f32 s[{sT+4}:{sT+5}], v{S0+8}, s{sT+2}")
    a("s_nop 1")
    a(f"s_or_b64 vcc, vcc, s[{sT+4}:{sT+5}]")
    a(f"s_cbranch_vccz {L}_ok")
    fallback(a, L)
    a.label(f"{L}_ok")
    a(f"v_rcp_f32 v{T0+6}, v{S0+8}")
    a("s_nop 0")
    for r in range(8): a(f"v_mul_f32 v{S0+r}, v{S0+r}, v{T0+6}")
    for q in range(4): a(f"v_cvt_pk_bf16_f32 v{P+q}, v{S0+2*q}, v{S0+2*q+1}")
    a(f"s_mul_i32 s{sT+1}, s{tb}, 88")
    a(f"s_lshl_b32 s{sT+2}, s{sJ}, 2")
    a(f"s_add_u32 s{sT+2}, s{sT+2}, s{sLO}")
    a(f"s_add_u32 s{sT+3}, s{sT+1}, s{sT+2}")
    a(f"s_lshl_b32 s{sT+3}, s{sT+3}, 10")
    a(f"s_add_u32 s{sT+3}, s{sT+3}, {WS_HO}")
    a(f"buffer_store_dwordx4 {vr(P,4)}, v{T0+1}, {srd(sWS)}, s{sT+3} offen sc1")
    if gemm:
        a(f"v_lshlrev_b32 v{T0+3}, 16, v{vB}")
        for r in range(16): a(f"v_add_f32 v{S1+r}, v{S1+r}, v{T0+3}")
        for q in range(8):
            zr = Z1P + q
            a(f"v_lshlrev_b32 v{T0+6}, 16, v{zr}")
            a(f"v_and_b32 v{T0+7}, 0xffff0000, v{zr}")
            a(f"v_mul_f32 v{S1+2*q}, v{S1+2*q}, v{T0+6}")
            a(f"v_mul_f32 v{S1+2*q+1}, v{S1+2*q+1}, v{T0+7}")
            a(f"v_cvt_pk_bf16_f32 v{W0+q}, v{S1+2*q}, v{S1+2*q+1}")
        a(f"s_lshl_b32 s{sT+2}, s{sT+2}, 1")
        a(f"s_add_u32 s{sT+3}, s{sT+1}, s{sT+2}")
        a(f"s_add_u32 s{sT+3}, s{sT+3}, 32")
        a(f"s_lshl_b32 s{sT+3}, s{sT+3}, 10")
        a(f"s_add_u32 s{sT+3}, s{sT+3}, {WS_HO}")
        a(f"buffer_store_dwordx4 {vr(W0,4)}, v{T0+1}, {srd(sWS)}, s{sT+3} offen sc1")
        a(f"buffer_store_dwordx4 {vr(W1,4)}, v{T0+1}, {srd(sWS)}, s{sT+3} offen offset:1024 sc1")

def fallback(a, L):
    Kt, St, NMt, Ot = W0, NM0, NM1, O0
    a(f"v_add_u32 v{T0+16}, {WS_KF}, v{T0+1}")
    a(f"v_mov_b32 v{T0+17}, 0xff800000")
    a(f"s_mov_b32 s{sT+2}, 0")
    a.label(f"{L}_fb1")
    a(f"buffer_load_dwordx4 {vr(Kt,4)}, v{T0+16}, {srd(sWS)}, s{sT+2} offen sc1")
    a("s_waitcnt vmcnt(0)")
    mfma(a, St, Kt, KF, None)
    a("s_nop 7"); a("s_nop 7")
    for k in range(0, 16, 2): a(f"v_max3_f32 v{T0+17}, v{T0+17}, v{St+k}, v{St+k+1}")
    a(f"s_add_u32 s{sT+2}, s{sT+2}, 1024")
    a(f"s_cmp_lt_u32 s{sT+2}, 65536")
    a(f"s_cbranch_scc1 {L}_fb1")
    a(f"v_mov_b32 v{T0+18}, v{T0+17}")
    a("s_nop 1")
    a(f"v_permlane32_swap_b32 v{T0+17}, v{T0+18}")
    a("s_nop 1")
    a(f"v_max_f32 v{T0+17}, v{T0+17}, v{T0+18}")
    for k in range(16):
        a(f"v_sub_f32 v{NMt+k}, 0, v{T0+17}")
        a(f"v_mov_b32 v{Ot+k}, 0")
    a(f"v_and_b32 v{T0+18}, 15, v0")
    a(f"v_lshlrev_b32 v{T0+18}, 4, v{T0+18}")
    a(f"v_lshl_add_u32 v{T0+18}, v{vH}, 8, v{T0+18}")
    a(f"v_add_u32 v{T0+18}, {WS_VF}, v{T0+18}")
    a(f"s_mov_b32 s{sT+2}, 0")
    a.label(f"{L}_fb2")
    a(f"buffer_load_dwordx4 {vr(Kt,4)}, v{T0+16}, {srd(sWS)}, s{sT+2} offen sc1")
    a(f"s_mov_b64 exec, s[{sM16}:{sM16+1}]")
    a(f"buffer_load_dwordx4 {vr(V0,4)}, v{T0+18}, {srd(sWS)}, s{sT+2} offen sc1")
    a(f"buffer_load_dwordx4 {vr(V1,4)}, v{T0+18}, {srd(sWS)}, s{sT+2} offen offset:512 sc1")
    a("s_mov_b64 exec, -1")
    a("s_waitcnt vmcnt(0)")
    mfma(a, St, Kt, KF, NMt)
    a("s_nop 7"); a("s_nop 7")
    for k in range(16): a(f"v_exp_f32 v{St+k}, v{St+k}")
    a("s_nop 0")
    for i in range(8): a(f"v_cvt_pk_bf16_f32 v{P+i}, v{St+2*i}, v{St+2*i+1}")
    a("s_nop 1")
    mfma(a, Ot, V0, P, Ot)
    mfma(a, Ot, V1, P + 4, Ot)
    a(f"s_add_u32 s{sT+2}, s{sT+2}, 1024")
    a(f"s_cmp_lt_u32 s{sT+2}, 65536")
    a(f"s_cbranch_scc1 {L}_fb2")
    a("s_nop 7"); a("s_nop 7")
    for r in range(9): a(f"v_mov_b32 v{S0+r}, v{Ot+r}")

def phase3(a, L):
    a("s_barrier")
    a.vm.items = ['st']
    for s in range(12): wout_dma(a, s)
    a.wait(vm='st')
    a("s_barrier")
    rstamp(a, 8)
    t = 8
    a(f"s_cmp_eq_u32 s{sW}, 0")
    a(f"s_cbranch_scc0 {L}_hw")
    flag_set(a, 2, t)
    a(f"s_lshl_b32 s{sT}, s{sI}, 10")
    a(f"s_add_u32 s{sT}, s{sT}, {WS_FL + 8}")
    a(f"v_lshlrev_b32 v{t}, 7, v{vL}")
    a(f"v_add_u32 v{t}, s{sT}, v{t}")
    a(f"v_min_u32 v{t}, {WS_END - 4}, v{t}")
    poll(a, L + "_ho", t, t + 1, 8)
    a.label(f"{L}_hw")
    r, c16, un = t, t + 1, t + 2
    a(f"v_bfe_u32 v{r}, v{vL}, 2, 2")
    a(f"v_and_b32 v{c16}, 3, v{vL}")
    a(f"v_bfe_u32 v{un}, v{vL}, 4, 1")
    a(f"v_lshlrev_b32 v{vRd3}, 9, v{vH}")
    a(f"v_lshl_add_u32 v{vRd3}, v{r}, 6, v{vRd3}")
    a(f"v_lshl_add_u32 v{vRd3}, v{un}, 5, v{vRd3}")
    a(f"v_lshl_add_u32 v{vRd3}, v{c16}, 3, v{vRd3}")
    a(f"s_lshl_b32 s{sT}, s{sLO}, 14")
    a(f"s_add_u32 s{sT}, s{sT}, {LDS_WO}")
    a(f"v_add_u32 v7, s{sT}, v{vRd3}")
    a(f"s_mul_i32 s{sT}, s{sLO}, {12*2048}")
    a(f"v_add_u32 v{vRd3}, s{sT}, v{vRd3}")
    a(f"v_lshlrev_b32 v{vHO}, 4, v{vL}")
    a(f"s_lshl_b32 s{sT}, s{sI}, 1")
    a(f"s_add_u32 s{sT}, s{sT}, s{sHI}")
    a(f"s_mul_i32 s{sT+8}, s{sT}, 88")
    a(f"s_lshl_b32 s{sT+1}, s{sLO}, 3")
    a(f"s_add_u32 s{sT+9}, s{sT+8}, s{sT+1}")
    a(f"s_lshl_b32 s{sT+9}, s{sT+9}, 10")
    a(f"s_add_u32 s{sT+9}, s{sT+9}, {WS_HO}")
    a(f"s_mul_i32 s{sT+1}, s{sLO}, 14")
    a(f"s_add_u32 s{sT+8}, s{sT+8}, s{sT+1}")
    a(f"s_add_u32 s{sT+8}, s{sT+8}, 32")
    a(f"s_lshl_b32 s{sT+8}, s{sT+8}, 10")
    a(f"s_add_u32 s{sT+8}, s{sT+8}, {WS_HO}")
    a("s_waitcnt vmcnt(0)")
    a("s_barrier")
    rstamp(a, 9)
    a.vm.items = []; a.lg.items = []
    def h_load(k):
        base, s = (sT + 9, k) if k < 8 else (sT + 8, k - 8)
        a(f"s_add_u32 s{sT+1}, s{base}, {(s // 4) * 4096}")
        a.vmem(f"buffer_load_dwordx4 {vr(HO+4*k,4)}, v{vHO}, {srd(sWS)}, s{sT+1} offen offset:{(s % 4) * 1024} sc1", ('H', k))
    for k in range(22): h_load(k)
    xa = 16
    a(f"s_lshl_b32 s{sT}, s{sI}, 6")
    a(f"s_lshl_b32 s{sT+1}, s{sHI}, 5")
    a(f"s_add_u32 s{sT}, s{sT}, s{sT+1}")
    a(f"v_add_u32 v{xa}, s{sT}, v{vN}")
    a(f"v_lshlrev_b32 v{xa}, 10, v{xa}")
    a(f"v_lshl_add_u32 v{xa}, v{vH}, 3, v{xa}")
    a(f"s_lshl_b32 s{sT}, s{sJ}, 7")
    a(f"s_lshl_b32 s{sT+1}, s{sLO}, 5")
    a(f"s_add_u32 s{sT}, s{sT}, s{sT+1}")
    a(f"v_add_u32 v{xa}, s{sT}, v{xa}")
    a.vmem(f"buffer_load_dwordx2 {vr(xa+2,2)}, v{xa}, {srd(sX)}, 0 offen", 'x')
    a.vmem(f"buffer_load_dwordx2 {vr(xa+4,2)}, v{xa}, {srd(sX)}, 0 offen offset:16", 'x')
    def w_reads(k, buf):
        if k < 8: va, off = 7, k * 2048
        elif k < 20: va, off = vRd3, (k - 8) * 2048
        else: va, off = 7, (k - 20) * 2048
        for cb in range(2):
            for sec in range(2):
                a.ds(f"ds_read_b64_tr_b16 {vr(buf + 4*cb + 2*sec, 2)}, v{va} offset:{off + cb*256 + sec*1024}", ('R', k))
    def compute(k0, k1):
        for k in range(k0, k1):
            if k == k0: w_reads(k, WB + 8 * (k % 2))
            if k + 1 < k1: w_reads(k + 1, WB + 8 * ((k + 1) % 2))
            a.wait(vm=('H', k), lg=('R', k))
            b = WB + 8 * (k % 2)
            mfma(a, ACC, b, HO + 4 * k, None if k == 0 else ACC)
            mfma(a, ACC + 16, b + 4, HO + 4 * k, None if k == 0 else ACC + 16)
    compute(0, 8)
    a.wait_all(vm=False, lg=True)
    a("s_barrier")
    wout_dma(a, 12); wout_dma(a, 13)
    compute(8, 20)
    a.wait(vm=('WH', 13))
    a("s_barrier")
    compute(20, 22)
    rstamp(a, 10)
    a("s_nop 7"); a("s_nop 7")
    a.wait_all(vm=False, lg=True)
    a("s_barrier")
    t = 8
    a(f"v_lshlrev_b32 v{t+6}, 4, v{vL}")
    a(f"s_lshl_b32 s{sT}, s{sHI}, 15")
    a(f"s_lshl_b32 s{sT+1}, s{sLO}, 11")
    a(f"s_add_u32 s{sT+1}, s{sT+1}, s{sT}")
    a(f"v_add_u32 v{t+7}, s{sT+1}, v{t+6}")
    for p in range(4):
        a(f"ds_write_b128 v{t+7}, {vr(ACC+8*p,4)} offset:{p*8192}")
        a(f"ds_write_b128 v{t+7}, {vr(ACC+8*p+4,4)} offset:{p*8192+1024}")
    a(f"s_lshl_b32 s{sT+1}, s{sLO}, 13")
    a(f"s_add_u32 s{sT+1}, s{sT+1}, s{sT}")
    a(f"v_add_u32 v{t+7}, s{sT+1}, v{t+6}")
    a("s_waitcnt lgkmcnt(0)")
    a("s_barrier")
    for s_ in range(4):
        a(f"ds_read_b128 {vr(HO+8*s_,4)}, v{t+7} offset:{s_*2048}")
        a(f"ds_read_b128 {vr(HO+8*s_+4,4)}, v{t+7} offset:{s_*2048+1024}")
    a("s_waitcnt lgkmcnt(0)")
    for r_ in range(8):
        a(f"v_add_f32 v{HO+r_}, v{HO+r_}, v{HO+8+r_}")
        a(f"v_add_f32 v{HO+16+r_}, v{HO+16+r_}, v{HO+24+r_}")
    for r_ in range(8): a(f"v_add_f32 v{HO+r_}, v{HO+r_}, v{HO+16+r_}")
    a("s_waitcnt vmcnt(0)")
    for q in range(4):
        xr = xa + 2 + q
        a(f"v_lshlrev_b32 v{t+14}, 16, v{xr}")
        a(f"v_and_b32 v{t+15}, 0xffff0000, v{xr}")
        a(f"v_add_f32 v{HO+2*q}, v{HO+2*q}, v{t+14}")
        a(f"v_add_f32 v{HO+2*q+1}, v{HO+2*q+1}, v{t+15}")
        a(f"v_cvt_pk_bf16_f32 v{HO+16+q}, v{HO+2*q}, v{HO+2*q+1}")
    a(f"buffer_store_dwordx2 {vr(HO+16,2)}, v{xa}, {srd(sOUT)}, 0 offen")
    a(f"buffer_store_dwordx2 {vr(HO+18,2)}, v{xa}, {srd(sOUT)}, 0 offen offset:16")
    a("s_waitcnt vmcnt(0)")

def gen(name):
    a = Asm()
    a(f".globl {name}\n.p2align 8\n.type {name},@function")
    a.label(name)
    a("s_cmp_ge_u32 s2, 256")
    a(f"s_cbranch_scc1 {name}_exit")
    rstamp(a, 0)
    for (s, off) in ((sWS, 96), (sX, 0), (sWQ, 8), (sWIN, 48), (sWSP, 56), (sBSP, 64), (sWO, 32), (sWOUT, 72), (sOUT, 80), (sDBG, 88)):
        a(f"s_load_dwordx2 s[{s}:{s+1}], s[0:1], {off}")
    a(f"s_load_dwordx4 s[{sWK}:{sWK+3}], s[0:1], 16")
    a(f"v_readfirstlane_b32 s{sW}, v0")
    a(f"v_and_b32 v{vL}, 63, v0")
    a(f"v_lshrrev_b32 v{vH}, 5, v{vL}")
    a(f"v_and_b32 v{vN}, 31, v0")
    a(f"s_lshr_b32 s{sW}, s{sW}, 6")
    a(f"s_and_b32 s{sI}, s2, 7")
    a(f"s_lshl_b32 s{sI}, s{sI}, 2")
    a(f"s_bfe_u32 s{sT}, s2, 0x20003")
    a(f"s_add_u32 s{sI}, s{sI}, s{sT}")
    a(f"s_lshr_b32 s{sJ}, s2, 5")
    a(f"s_lshr_b32 s{sHI}, s{sW}, 2")
    a(f"s_and_b32 s{sLO}, s{sW}, 3")
    a(f"s_mov_b32 s{sM16}, 0x0000ffff")
    a(f"s_mov_b32 s{sM16+1}, 0x0000ffff")
    regs = p1_common(a)
    a("s_waitcnt lgkmcnt(0)")
    for (s, size) in ((sWS, WS_END + (0x100000 if Stamps.on else 0)), (sX, 2048*512*2), (sWQ, 512*512*2), (sWIN, 512*1792*2), (sWSP, 2048*2048*2),
                      (sBSP, 4096), (sWO, 512*512*2), (sWOUT, 896*512*2), (sOUT, 2048*512*2)):
        a(f"s_mov_b32 s{s+2}, {size}")
        a(f"s_mov_b32 s{s+3}, 0x00020000")
    ln1_load(a)
    a(f"s_cmp_eq_u32 s{sJ}, 7")
    a(f"s_cbranch_scc1 {name}_j7")
    vm0, lg0 = a.vm.copy(), a.lg.copy()
    phase1(a, name + "_a1", False, regs)
    a(f"s_lshl_b32 s{sT}, s{sI}, 6")
    a(f"s_lshl_b32 s{sT+1}, s{sHI}, 5")
    a(f"s_add_u32 s{sT}, s{sT}, s{sT+1}")
    a(f"v_add_u32 v{vT}, s{sT}, v{vN}")
    a(f"v_lshlrev_b32 v{vT}, 1, v{vT}")
    a(f"buffer_load_ushort v{vB}, v{vT}, {srd(sBSP)}, 0 offen")
    for q in range(8): a(f"v_mov_b32 v{Z1P+q}, v{Z1T+q}")
    z2_finish(a, name + "_a1")
    a("s_waitcnt vmcnt(0)")
    a("s_barrier")
    a(f"s_cmp_eq_u32 s{sW}, 1")
    a(f"s_cbranch_scc0 {name}_a_zf")
    flag_set(a, 1, vT)
    a.label(f"{name}_a_zf")
    rstamp(a, 4)
    a.vm.items = []; a.lg.items = []
    p2_addresses(a)
    p2_body(a, True, name + "_a2")
    p2_finish(a, True, name + "_a2")
    a(f"s_branch {name}_p3")
    a.label(f"{name}_j7")
    a.vm, a.lg = vm0, lg0
    phase1(a, name + "_b1", True, regs)
    a("s_waitcnt vmcnt(0)")
    rstamp(a, 4)
    a.vm.items = []; a.lg.items = []
    p2_addresses(a)
    p2_body(a, False, name + "_b2")
    p2_finish(a, False, name + "_b2")
    a.label(f"{name}_p3")
    phase3(a, name + "_p3")
    rstamp(a, 11)
    rstamp_out(a, 0, 12, sWS, sW, 8, sT, WS_END)
    a.label(f"{name}_exit")
    a("s_endpgm")
    return a.text()

def kd(name, vgpr=256):
    return f""".p2align 6
.amdhsa_kernel {name}
  .amdhsa_next_free_vgpr {vgpr}
  .amdhsa_next_free_sgpr 102
  .amdhsa_accum_offset {vgpr}
  .amdhsa_group_segment_fixed_size 0
  .amdhsa_kernarg_size 104
  .amdhsa_user_sgpr_count 2
  .amdhsa_user_sgpr_kernarg_segment_ptr 1
  .amdhsa_system_sgpr_workgroup_id_x 1
  .amdhsa_float_denorm_mode_32 3
.end_amdhsa_kernel
"""
NAME = "parallel_sum__grouped_kv_mqa__mixer_gmlp__prompt"
def build():
    hdr = open('cdna_kernels/%s.s.ref' % NAME).read().split("; Override launch geometry")[0]
    s = hdr + "; @launch grid=(256,1,1) block=(512,1,1) lds=163840\n"
    s += '.amdgcn_target "amdgcn-amd-amdhsa--gfx950"\n.text\n' + gen(NAME + "_kernel")
    s += '.section .rodata,"a"\n' + kd(NAME + "_kernel")
    return s
if __name__ == "__main__":
    import sys, asm
    out = sys.argv[1]
    for kv in sys.argv[2:]:
        if kv == 'stamp': asm.Stamps.on = True
        else:
            k, v = kv.split('='); CFG[k] = int(v)
    open(out, 'w').write(build())
```
